```python
import torch

def _softmax(x, axis=-1):
    return torch.softmax(x, dim=axis)

def _gelu(x):
    return torch.nn.functional.gelu(x, approximate='tanh')

def _silu(x):
    return torch.nn.functional.silu(x)

def _sigmoid(x):
    return torch.sigmoid(x)

def _layernorm(x, axis=-1, eps=1e-05):
    m = x.mean(dim=axis, keepdim=True)
    v = x.var(dim=axis, keepdim=True, unbiased=False)
    return (x - m) / torch.sqrt(v + eps)

def _scatter_add(tgt, idx, src, axis=0):
    return tgt.clone().index_add_(axis, idx, src)

def _segment_sum(src, seg, n):
    out = torch.zeros((n,) + src.shape[1:], dtype=src.dtype)
    return out.index_add_(0, seg, src)

def _pad(x, pw):
    flat = tuple((v for pair in reversed(pw) for v in pair))
    return torch.nn.functional.pad(x, flat)
kernel_name = 'adaLN_cond__mha_block__glu_gated_bilinear__prompt'

def setup_inputs():

    _w = lambda a: (lambda t: t.to(torch.bfloat16) if t.is_floating_point() else t)(torch.as_tensor(a))

    def _A_setup():
        B, S, D, H = (1, 2048, 1024, 32)
        return {'x': _w((lambda *s: torch.randn(*s, dtype=torch.bfloat16) * 0.05)(B, S, D)), 'wqkv': _w((lambda *s: torch.randn(*s, dtype=torch.bfloat16) * 0.05)(D, 3 * D)), 'wo': _w((lambda *s: torch.randn(*s, dtype=torch.bfloat16) * 0.05)(D, D))}
    _A_in = _A_setup()

    def _B_setup():
        B, S, D, F = (1, 2048, 1024, 3584)
        return {'x': _w((lambda *s: torch.randn(*s, dtype=torch.bfloat16) * 0.05)(B, S, D)), 'w_gate': _w((lambda *s: torch.randn(*s, dtype=torch.bfloat16) * 1.6)(D, F) * D ** (-0.5)), 'w_up': _w((lambda *s: torch.randn(*s, dtype=torch.bfloat16) * 1.6)(D, F) * D ** (-0.5)), 'w_down': _w((lambda *s: torch.randn(*s, dtype=torch.bfloat16) * 1.6)(F, D) * F ** (-0.5))}
    _B_in = _B_setup()
    return {'A_x': _A_in['x'], 'A_wqkv': _A_in['wqkv'], 'A_wo': _A_in['wo'], 'B_x': _B_in['x'], 'B_w_gate': _B_in['w_gate'], 'B_w_up': _B_in['w_up'], 'B_w_down': _B_in['w_down'], 'c': _w((lambda *s: torch.randn(*s, dtype=torch.bfloat16) * 0.2)(1, 1024) * 8.0), 'w_mod': _w((lambda *s: torch.randn(*s, dtype=torch.bfloat16) * 0.2)(1024, 6 * 1024) * 1024 ** (-0.5) * 8.0)}

def reference(A_x, A_wqkv, A_wo, B_x, B_w_gate, B_w_up, B_w_down, c, w_mod):

    def _A_ref(x, wqkv, wo):
        B, S, D = x.shape
        H = 32
        Dh = D // H
        qkv = (lambda x, *d: x.permute(*d))((x @ wqkv).reshape(B, S, 3, H, Dh), 2, 0, 3, 1, 4)
        q, k, v = (qkv[0], qkv[1], qkv[2])
        scores = torch.einsum('bhqd,bhkd->bhqk', q, k) * Dh ** (-0.5)
        p = _softmax(scores, axis=-1)
        o = torch.einsum('bhqk,bhkd->bhqd', p, v)
        return (lambda x, *d: x.permute(*d))(o, 0, 2, 1, 3).reshape(B, S, D) @ wo

    def _B_ref(x, w_gate, w_up, w_down):
        g = torch.einsum('bsd,df->bsf', x, w_gate)
        u = torch.einsum('bsd,df->bsf', x, w_up)
        h = g * u
        return torch.einsum('bsf,fd->bsd', h, w_down)
    x = A_x
    mod = (_silu(c) @ w_mod).reshape(c.shape[0], 6, 1, -1)
    sa, ca, ga, sb, cb, gb = (mod[:, 0].clone(), mod[:, 1].clone(), mod[:, 2].clone(), mod[:, 3].clone(), mod[:, 4].clone(), mod[:, 5].clone())
    h = _layernorm(x, axis=-1) * (1 + ca) + sa
    x = x + ga * _A_ref(h, A_wqkv, A_wo)
    h = _layernorm(x, axis=-1) * (1 + cb) + sb
    x = x + gb * _B_ref(h, B_w_gate, B_w_up, B_w_down)
    return x
```

```python
import re

_RANGE = re.compile(r'^([vas])\[(\d+):(\d+)\]$')
_SINGLE = re.compile(r'^([vas])(\d+)$')


def regs_of(op):
    if not isinstance(op, str):
        return set()
    o = op.strip()
    neg = False
    if o.startswith('-'):
        o = o[1:]
    if o.startswith('abs(') and o.endswith(')'):
        o = o[4:-1]
    m = _RANGE.match(o)
    if m:
        return {(m.group(1), i) for i in range(int(m.group(2)), int(m.group(3)) + 1)}
    m = _SINGLE.match(o)
    if m:
        return {(m.group(1), int(m.group(2)))}
    if o in ('vcc', 'exec', 'm0', 'scc'):
        return {(o, 0)}
    return set()


def R(cls, lo, n=1):
    if n == 1:
        return '%s%d' % (cls, lo)
    return '%s[%d:%d]' % (cls, lo, lo + n - 1)


def V(lo, n=1):
    return R('v', lo, n)


def A(lo, n=1):
    return R('a', lo, n)


def S(lo, n=1):
    return R('s', lo, n)


TRANS = ('v_exp_f32', 'v_log_f32', 'v_rcp_f32', 'v_rsq_f32', 'v_sqrt_f32', 'v_sin_f32', 'v_cos_f32')


class Ins:
    __slots__ = ('text', 'cls', 'w', 'r', 'c', 'states', 'wide_data', 'passes', 'dpp', 'mn')


class Asm:
    def __init__(self):
        self.lines = []
        self.hist = []
        self.nops_inserted = 0

    def raw(self, text):
        self.lines.append(text)

    def comment(self, text):
        self.lines.append('    ; ' + text)

    def label(self, name):
        self.lines.append(name + ':')

    def reset_hist(self):
        self.hist = []

    def loop_guard(self):
        self.nop(16)

    def nop(self, n):
        while n > 0:
            k = min(n, 16)
            self._push('s_nop %d' % (k - 1), 'nop', set(), set(), states=k)
            n -= k

    def _push(self, text, cls, w, r, c=frozenset(), states=1, wide=frozenset(), passes=0, dpp=False, mn=''):
        ins = Ins()
        ins.text = text
        ins.cls = cls
        ins.w = w
        ins.r = r
        ins.c = c
        ins.states = states
        ins.wide_data = wide
        ins.passes = passes
        ins.dpp = dpp
        ins.mn = mn
        self.hist.append(ins)
        if len(self.hist) > 64:
            self.hist.pop(0)
        self.lines.append('    ' + text)

    def _need(self, cls, w, r, c, passes, dpp, mn):
        need = 0
        dist = 0
        isvalu = cls in ('valu', 'trans', 'permlane', 'readlane')
        for p in reversed(self.hist):
            if dist >= 24:
                break
            req = 0
            pw = p.w
            if p.cls in ('valu', 'trans', 'permlane', 'readlane'):
                vw = {x for x in pw if x[0] in 'va'}
                sw = {x for x in pw if x[0] in ('s', 'vcc')}
                if cls == 'mfma' and (vw & (r | c)):
                    req = max(req, 2)
                if p.cls == 'trans' and isvalu and cls != 'trans' and (vw & r):
                    req = max(req, 1)
                if sw:
                    if isvalu and (sw & r):
                        req = max(req, 4 if cls == 'readlane' else 2)
                    if cls in ('vmem', 'dma') and (sw & r):
                        req = max(req, 5)
                if cls == 'readlane' and (vw & r):
                    req = max(req, 1)
                if cls == 'permlane' and (vw & r):
                    req = max(req, 2)
                if dpp and (vw & r):
                    req = max(req, 2)
                if ('exec', 0) in pw:
                    req = max(req, 5)
            if p.cls == 'mfma':
                big = 8 if p.passes == 4 else 12
                d = pw
                if cls == 'mfma':
                    if d & r:
                        req = max(req, big)
                    if d & c:
                        if not (d == c and passes == p.passes):
                            req = max(req, 6 if p.passes == 4 else 10)
                    if (d & w) and not (d == w and d == c and passes == p.passes):
                        req = max(req, big)
                elif cls in ('valu', 'trans', 'permlane', 'readlane', 'vmem', 'ds', 'dma'):
                    if (d & r) or (d & w):
                        req = max(req, big)
                if isvalu and (p.c & w):
                    req = max(req, 3 if p.passes == 4 else 7)
            if p.cls == 'salu' and ('m0', 0) in pw and cls == 'dma':
                req = max(req, 1)
            if p.wide_data:
                if isvalu and (p.wide_data & w):
                    req = max(req, 2)
                elif (p.wide_data & w):
                    req = max(req, 1)
            if req > dist:
                need = max(need, req - dist)
            dist += p.states
        return need

    def emit(self, mn, ops, cls, w, r, c=frozenset(), mods='', wide=frozenset(), passes=0, dpp=False):
        n = self._need(cls, w, r, c, passes, dpp, mn)
        if n:
            self.nops_inserted += n
            self.nop(n)
        text = mn + ' ' + ', '.join(str(o) for o in ops)
        if mods:
            text += ' ' + mods
        self._push(text.strip(), cls, w, r, c, 1, wide, passes, dpp, mn)

    def valu(self, mn, dst, *srcs, mods='', dpp=False):
        w = regs_of(dst)
        r = set()
        for s_ in srcs:
            r |= regs_of(s_)
        if mn.startswith('v_fmac') or mn.startswith('v_pk_fmac'):
            r |= w
        if mn.startswith('v_cndmask') and len(srcs) == 2:
            r |= {('vcc', 0)}
            srcs = srcs + ('vcc',)
            r |= {('vcc', 0)}
        cls = 'trans' if mn in TRANS else 'valu'
        self.emit(mn, (dst,) + srcs, cls, w, r, mods=mods, dpp=dpp)

    def permlane(self, mn, a, b):
        w = regs_of(a) | regs_of(b)
        self.emit(mn, (a, b), 'permlane', w, set(w))

    def readlane(self, mn, sdst, *srcs):
        r = set()
        for s_ in srcs:
            r |= regs_of(s_)
        self.emit(mn, (sdst,) + srcs, 'readlane', regs_of(sdst), r)

    def salu(self, mn, *ops, nodst=False):
        if nodst:
            w = {('scc', 0)}
            r = set()
            for o in ops:
                r |= regs_of(o)
        else:
            w = regs_of(ops[0]) | {('scc', 0)}
            r = set()
            for o in ops[1:]:
                r |= regs_of(o)
        self.emit(mn, ops, 'salu', w, r)

    def smem(self, mn, dst, base, off):
        self.emit(mn, (dst, base, off), 'smem', regs_of(dst), regs_of(base))

    def mfma(self, shape, d, a, b, c):
        passes = 4 if shape.startswith('16x16x32') else 8
        mn = 'v_mfma_f32_%s_bf16' % shape
        cc = regs_of(c)
        self.emit(mn, (d, a, b, c), 'mfma', regs_of(d), regs_of(a) | regs_of(b), cc, passes=passes)

    def ds_read(self, mn, dst, addr, off=0):
        mods = ('offset:%d' % off) if off else ''
        assert 0 <= off < 65536, off
        self.emit(mn, (dst, addr), 'ds', regs_of(dst), regs_of(addr), mods=mods)

    def ds_write(self, mn, addr, data, off=0):
        mods = ('offset:%d' % off) if off else ''
        assert 0 <= off < 65536, off
        self.emit(mn, (addr, data), 'ds', set(), regs_of(addr) | regs_of(data), mods=mods)

    def buf_load(self, mn, dst, voff, srd, soff='0', off=0, extra=''):
        mods = 'offen' + ((' offset:%d' % off) if off else '') + ((' ' + extra) if extra else '')
        assert 0 <= off < 4096, off
        self.emit(mn, (dst, voff, srd, soff), 'vmem', regs_of(dst),
                  regs_of(voff) | regs_of(srd) | regs_of(soff), mods=mods)

    def buf_store(self, mn, data, voff, srd, soff='0', off=0, extra=''):
        mods = 'offen' + ((' offset:%d' % off) if off else '') + ((' ' + extra) if extra else '')
        assert 0 <= off < 4096, off
        d = regs_of(data)
        wide = d if len(d) >= 3 else frozenset()
        self.emit(mn, (data, voff, srd, soff), 'vmem', set(),
                  d | regs_of(voff) | regs_of(srd) | regs_of(soff), mods=mods, wide=wide)

    def dma(self, voff, srd, soff='0', off=0):
        mods = 'offen' + ((' offset:%d' % off) if off else '') + ' lds'
        assert 0 <= off < 4096, off
        self.emit('buffer_load_dwordx4', (voff, srd, soff), 'dma', set(),
                  regs_of(voff) | regs_of(srd) | regs_of(soff) | {('m0', 0)}, mods=mods)

    def waitcnt(self, vm=None, lgkm=None):
        t = []
        if vm is not None:
            assert 0 <= vm < 64
            t.append('vmcnt(%d)' % vm)
        if lgkm is not None:
            assert 0 <= lgkm < 16
            t.append('lgkmcnt(%d)' % lgkm)
        self._push('s_waitcnt ' + ' '.join(t), 'other', set(), set())

    def other(self, text):
        self._push(text, 'other', set(), set())

    def barrier(self):
        self.other('s_barrier')

    def branch(self, mn, label):
        self.other('%s %s' % (mn, label))

    def text(self):
        return '\n'.join(self.lines) + '\n'
```

```python
import math
import struct
import sys
import os

sys.path.insert(0, os.path.dirname(os.path.abspath(__file__)))
from asmlib import Asm, V, A, S

NAME = 'adaLN_cond__mha_block__glu_gated_bilinear__prompt'

MB = 1 << 20
WS_MOD = 0
WS_H1 = 1 * MB
WS_Q = 8 * MB
WS_K = 12 * MB
WS_VT = 16 * MB
WS_O = 20 * MB
WS_X1 = 24 * MB
WS_H2 = 28 * MB
WS_HH = 32 * MB

P_X, P_WQKV, P_WO, P_BX, P_WG, P_WU, P_WD, P_C, P_WMOD, P_OUT, P_DBG, P_WS = [16 + 2 * i for i in range(12)]


def f32bits(x):
    return struct.unpack('<I', struct.pack('<f', x))[0]


def hexf(x):
    return '0x%08x' % f32bits(x)


KERNELS = []


def begin_kernel(a, label, nwg):
    a.raw('.p2align 8')
    a.raw('.globl %s' % label)
    a.raw('.type %s,@function' % label)
    a.raw(label + ':')
    a.reset_hist()
    a.salu('s_cmp_ge_u32', 's2', nwg, nodst=True)
    a.branch('s_cbranch_scc1', label + '_end')
    a.smem('s_load_dwordx16', S(16, 16), S(0, 2), 0)
    a.smem('s_load_dwordx8', S(32, 8), S(0, 2), 64)


def end_kernel(a, label):
    a.label(label + '_end')
    a.other('s_endpgm')


def srd(a, d, ptr, off, nbytes):
    a.salu('s_add_u32', S(d), S(ptr), off)
    a.salu('s_addc_u32', S(d + 1), S(ptr + 1), 0)
    a.salu('s_and_b32', S(d + 1), S(d + 1), '0xffff')
    a.salu('s_mov_b32', S(d + 2), nbytes)
    a.salu('s_mov_b32', S(d + 3), '0x00020000')


def bf16_round(a, dst, src):
    a.valu('v_cvt_pk_bf16_f32', dst, src, src)
    a.valu('v_and_b32', dst, '0xffff0000', dst)


def k_mod(a):
    label = 'mod_kernel'
    NWG = 192
    begin_kernel(a, label, NWG)
    a.salu('s_and_b32', 's3', 's2', 7)
    a.salu('s_mul_i32', 's3', 's3', 24)
    a.salu('s_lshr_b32', 's4', 's2', 3)
    a.salu('s_add_u32', 's3', 's3', 's4')
    a.waitcnt(lgkm=0)
    srd(a, 40, P_C, 0, 2048)
    srd(a, 44, P_WMOD, 0, 1024 * 12288)
    srd(a, 48, P_WS, WS_MOD, 6144 * 4)
    a.valu('v_lshlrev_b32', 'v1', 3, 'v0')
    a.buf_load('buffer_load_dwordx2', V(2, 2), 'v1', S(40, 4))
    a.valu('v_lshrrev_b32', 'v4', 2, 'v0')
    a.valu('v_and_b32', 'v5', 3, 'v0')
    a.salu('s_mov_b32', 's5', 12288)
    a.valu('v_mul_lo_u32', 'v6', 'v4', 's5')
    a.valu('v_lshlrev_b32', 'v7', 4, 'v5')
    a.valu('v_add_u32', 'v6', 'v6', 'v7')
    a.salu('s_lshl_b32', 's6', 's3', 6)
    for p in range(16):
        a.salu('s_add_u32', 's7', 's6', p * 64 * 12288)
        a.buf_load('buffer_load_dwordx4', V(64 + 4 * p, 4), 'v6', S(44, 4), 's7')
    a.waitcnt(vm=16)
    a.valu('v_lshlrev_b32', 'v8', 16, 'v2')
    a.valu('v_and_b32', 'v9', '0xffff0000', 'v2')
    a.valu('v_lshlrev_b32', 'v10', 16, 'v3')
    a.valu('v_and_b32', 'v11', '0xffff0000', 'v3')
    a.salu('s_mov_b32', 's8', hexf(-1.4426950408889634))
    for i in range(4):
        a.valu('v_mul_f32', V(12 + i), 's8', V(8 + i))
    for i in range(4):
        a.valu('v_exp_f32', V(12 + i), V(12 + i))
    for i in range(4):
        a.valu('v_add_f32', V(12 + i), '1.0', V(12 + i))
    for i in range(4):
        a.valu('v_rcp_f32', V(12 + i), V(12 + i))
    for i in range(4):
        a.valu('v_mul_f32', V(12 + i), V(8 + i), V(12 + i))
    for i in range(4):
        bf16_round(a, V(12 + i), V(12 + i))
    a.valu('v_lshlrev_b32', 'v16', 4, 'v0')
    a.ds_write('ds_write_b128', 'v16', V(12, 4))
    a.waitcnt(lgkm=0)
    a.barrier()
    a.valu('v_lshlrev_b32', 'v17', 2, 'v4')
    for p in range(16):
        a.ds_read('ds_read_b32', V(24 + p), 'v17', p * 256)
    for j in range(8):
        a.valu('v_mov_b32', V(40 + j), 0)
    a.waitcnt(vm=0, lgkm=0)
    for p in range(16):
        for d in range(4):
            src = V(64 + 4 * p + d)
            a.valu('v_lshlrev_b32', 'v48', 16, src)
            a.valu('v_and_b32', 'v49', '0xffff0000', src)
            a.valu('v_fmac_f32', V(40 + 2 * d), V(24 + p), 'v48')
            a.valu('v_fmac_f32', V(41 + 2 * d), V(24 + p), 'v49')
    a.valu('v_lshlrev_b32', 'v18', 5, 'v0')
    a.ds_write('ds_write_b128', 'v18', V(40, 4), 4096)
    a.ds_write('ds_write_b128', 'v18', V(44, 4), 4096 + 16)
    a.waitcnt(lgkm=0)
    a.barrier()
    a.valu('v_and_b32', 'v19', 31, 'v0')
    a.valu('v_lshrrev_b32', 'v20', 5, 'v0')
    a.valu('v_lshlrev_b32', 'v21', 10, 'v20')
    a.valu('v_lshl_add_u32', 'v21', 'v19', 2, 'v21')
    for i in range(8):
        a.ds_read('ds_read_b32', V(24 + i), 'v21', 4096 + i * 128)
    a.waitcnt(lgkm=0)
    for i in range(1, 8):
        a.valu('v_add_f32', 'v24', 'v24', V(24 + i))
    a.valu('v_lshlrev_b32', 'v22', 2, 'v0')
    a.ds_write('ds_write_b32', 'v22', 'v24', 12288)
    a.waitcnt(lgkm=0)
    a.barrier()
    a.valu('v_lshlrev_b32', 'v22', 2, 'v19')
    for i in range(8):
        a.ds_read('ds_read_b32', V(24 + i), 'v22', 12288 + i * 128)
    a.waitcnt(lgkm=0)
    for i in range(1, 8):
        a.valu('v_add_f32', 'v24', 'v24', V(24 + i))
    bf16_round(a, 'v24', 'v24')
    a.salu('s_lshr_b32', 's9', 's3', 5)
    a.salu('s_cmp_eq_u32', 's9', 1, nodst=True)
    a.branch('s_cbranch_scc1', 'mod_plus1')
    a.salu('s_cmp_eq_u32', 's9', 4, nodst=True)
    a.branch('s_cbranch_scc0', 'mod_store')
    a.label('mod_plus1')
    a.nop(2)
    a.valu('v_add_f32', 'v24', '1.0', 'v24')
    bf16_round(a, 'v24', 'v24')
    a.label('mod_store')
    a.nop(2)
    a.valu('v_cmp_gt_u32', 'vcc', 32, 'v0')
    a.salu('s_and_saveexec_b64', S(10, 2), 'vcc')
    a.branch('s_cbranch_execz', label + '_end')
    a.salu('s_lshl_b32', 's9', 's3', 7)
    a.valu('v_lshlrev_b32', 'v22', 2, 'v0')
    a.buf_store('buffer_store_dword', 'v24', 'v22', S(48, 4), 's9')
    end_kernel(a, label)
    KERNELS.append((label, (NWG, 1, 1), (256, 1, 1), 16384, 128, 128, 64))


def wave_sum(a, v, tmp, sbase):
    a.valu('v_add_f32', tmp, v, v, mods='quad_perm:[1,0,3,2] row_mask:0xf bank_mask:0xf', dpp=True)
    a.valu('v_add_f32', v, tmp, tmp, mods='quad_perm:[2,3,0,1] row_mask:0xf bank_mask:0xf', dpp=True)
    a.valu('v_add_f32', tmp, v, v, mods='row_half_mirror row_mask:0xf bank_mask:0xf', dpp=True)
    a.valu('v_add_f32', v, tmp, tmp, mods='row_mirror row_mask:0xf bank_mask:0xf', dpp=True)
    for i in range(4):
        a.readlane('v_readlane_b32', S(sbase + i), v, 16 * i)
    a.valu('v_mov_b32', v, S(sbase))
    for i in range(1, 4):
        a.valu('v_add_f32', v, S(sbase + i), v)


def k_ln(a, label, src_ptr, src_off, dst_off, shift_idx, scale_idx):
    NWG = 512
    begin_kernel(a, label, NWG)
    a.valu('v_lshrrev_b32', 'v1', 6, 'v0')
    a.valu('v_and_b32', 'v2', 63, 'v0')
    a.salu('s_lshl_b32', 's3', 's2', 2)
    a.valu('v_add_u32', 'v1', 's3', 'v1')
    a.valu('v_lshlrev_b32', 'v3', 11, 'v1')
    a.valu('v_lshl_add_u32', 'v3', 'v2', 4, 'v3')
    a.valu('v_lshlrev_b32', 'v4', 5, 'v2')
    a.waitcnt(lgkm=0)
    srd(a, 40, src_ptr, src_off, 2048 * 2048)
    srd(a, 44, P_WS, dst_off, 2048 * 2048)
    srd(a, 48, P_WS, WS_MOD, 6144 * 4)
    a.buf_load('buffer_load_dwordx4', V(8, 4), 'v3', S(40, 4))
    a.buf_load('buffer_load_dwordx4', V(12, 4), 'v3', S(40, 4), off=1024)
    a.salu('s_mov_b32', 's4', scale_idx * 4096)
    a.salu('s_mov_b32', 's5', shift_idx * 4096)
    for h in range(2):
        for q in range(2):
            a.buf_load('buffer_load_dwordx4', V(64 + 8 * h + 4 * q, 4), 'v4', S(48, 4), 's4', off=h * 2048 + q * 16)
    for h in range(2):
        for q in range(2):
            a.buf_load('buffer_load_dwordx4', V(80 + 8 * h + 4 * q, 4), 'v4', S(48, 4), 's5', off=h * 2048 + q * 16)
    a.waitcnt(vm=8)
    for d in range(8):
        a.valu('v_lshlrev_b32', V(16 + 2 * d), 16, V(8 + d))
        a.valu('v_and_b32', V(17 + 2 * d), '0xffff0000', V(8 + d))
    a.valu('v_add_f32', 'v32', 'v16', 'v17')
    for i in range(2, 16):
        a.valu('v_add_f32', 'v32', 'v32', V(16 + i))
    wave_sum(a, 'v32', 'v33', 8)
    a.valu('v_mul_f32', 'v32', hexf(1.0 / 1024), 'v32')
    a.valu('v_sub_f32', 'v34', 'v16', 'v32')
    a.valu('v_mul_f32', 'v35', 'v34', 'v34')
    for i in range(1, 16):
        a.valu('v_sub_f32', 'v34', V(16 + i), 'v32')
        a.valu('v_fmac_f32', 'v35', 'v34', 'v34')
    wave_sum(a, 'v35', 'v33', 8)
    a.valu('v_mul_f32', 'v35', hexf(1.0 / 1024), 'v35')
    bf16_round(a, 'v32', 'v32')
    bf16_round(a, 'v35', 'v35')
    a.valu('v_add_f32', 'v35', hexf(1e-5), 'v35')
    bf16_round(a, 'v35', 'v35')
    a.valu('v_sqrt_f32', 'v35', 'v35')
    bf16_round(a, 'v35', 'v35')
    a.valu('v_rcp_f32', 'v36', 'v35')
    a.waitcnt(vm=0)
    for i in range(16):
        x = V(16 + i)
        a.valu('v_sub_f32', x, x, 'v32')
        bf16_round(a, x, x)
        a.valu('v_mul_f32', x, x, 'v36')
        bf16_round(a, x, x)
        a.valu('v_mul_f32', x, x, V(64 + i))
        bf16_round(a, x, x)
        a.valu('v_add_f32', x, x, V(80 + i))
    for d in range(8):
        a.valu('v_cvt_pk_bf16_f32', V(8 + d), V(16 + 2 * d), V(17 + 2 * d))
    a.buf_store('buffer_store_dwordx4', V(8, 4), 'v3', S(44, 4))
    a.buf_store('buffer_store_dwordx4', V(12, 4), 'v3', S(44, 4), off=1024)
    end_kernel(a, label)
    KERNELS.append((label, (NWG, 1, 1), (256, 1, 1), 0, 96, 96, 64))


class Gemm:
    pass


def interleave(a, mf, others):
    n = len(mf)
    k = len(others)
    j = 0
    for i, m in enumerate(mf):
        m()
        tgt = (i + 1) * k // n
        while j < tgt:
            others[j]()
            j += 1
    while j < k:
        others[j]()
        j += 1


def k_gemm(a, g):
    label = g.label
    NWG = 256
    TM = 4
    NT = len(g.tiles)
    NCB = g.ncb
    NBUF = g.nbuf
    XB = 128 * 128
    BUFSZ = XB + NCB * 4096
    S_ = g.K // 64
    P = 4 + NCB
    assert S_ % NBUF == 0 and S_ >= 2 * NBUF
    begin_kernel(a, label, NWG)
    a.salu('s_and_b32', 's3', 's2', 3)
    a.salu('s_lshl_b32', 's3', 's3', 2)
    a.salu('s_bfe_u32', 's4', 's2', '0x20003')
    a.salu('s_add_u32', 's3', 's3', 's4')
    a.salu('s_bfe_u32', 's4', 's2', '0x10002')
    a.salu('s_lshl_b32', 's4', 's4', 3)
    a.salu('s_lshr_b32', 's5', 's2', 5)
    a.salu('s_add_u32', 's4', 's4', 's5')
    SM, SN = 's3', 's4'
    a.valu('v_lshrrev_b32', 'v1', 6, 'v0')
    a.readlane('v_readfirstlane_b32', 's6', 'v1')
    a.valu('v_and_b32', 'v2', 63, 'v0')
    SW = 's6'
    a.salu('s_lshr_b32', 's7', SW, 1)
    a.salu('s_and_b32', 's8', SW, 1)
    SWM, SWN = 's7', 's8'
    a.waitcnt(lgkm=0)
    a.salu('s_mul_i32', 's9', SM, 128 * g.lda)
    a.salu('s_add_u32', 's10', 's9', g.x_off)
    a.salu('s_sub_u32', 's11', 2048 * g.lda, 's9')
    srd(a, 40, g.x_ptr, 's10', 's11')
    for i, (ptr, cpn, cc, tot) in enumerate(g.wsrd):
        a.salu('s_mul_i32', 's9', SN, cpn)
        a.salu('s_add_u32', 's9', 's9', cc)
        a.salu('s_sub_u32', 's11', tot, 's9')
        srd(a, 44 + 4 * i, ptr, 's9', 's11')
    L = 'v2'
    a.valu('v_lshrrev_b32', 'v10', 3, L)
    a.valu('v_lshrrev_b32', 'v11', 4, L)
    a.salu('s_lshl_b32', 's9', SWN, 2)
    a.valu('v_add_u32', 'v12', 's9', 'v11')
    a.valu('v_and_b32', 'v13', 7, L)
    a.valu('v_xor_b32', 'v12', 'v12', 'v13')
    a.salu('s_lshl_b32', 's9', SW, 3)
    a.valu('v_add_u32', 'v13', 's9', 'v10')
    a.salu('s_mov_b32', 's9', g.lda)
    a.valu('v_mul_lo_u32', 'v13', 'v13', 's9')
    a.valu('v_lshl_add_u32', 'v4', 'v12', 4, 'v13')
    for j in range(1, 4):
        a.valu('v_add_u32', V(4 + j), 32 * g.lda * j, 'v4')
    a.valu('v_bfe_u32', 'v12', L, 2, 2)
    a.valu('v_lshl_add_u32', 'v13', 'v11', 2, 'v12')
    a.salu('s_lshl_b32', 's9', SW, 4)
    a.valu('v_add_u32', 'v13', 's9', 'v13')
    a.salu('s_mov_b32', 's9', g.ldw)
    a.valu('v_mul_lo_u32', 'v13', 'v13', 's9')
    a.valu('v_lshrrev_b32', 'v14', 5, L)
    a.valu('v_lshlrev_b32', 'v14', 1, 'v14')
    a.valu('v_and_b32', 'v15', 3, L)
    a.valu('v_xor_b32', 'v14', 'v14', 'v15')
    a.valu('v_lshl_add_u32', 'v8', 'v14', 4, 'v13')
    a.valu('v_and_b32', 'v13', 15, L)
    a.valu('v_lshrrev_b32', 'v14', 1, 'v13')
    a.valu('v_xor_b32', 'v14', 'v14', 'v11')
    a.valu('v_lshlrev_b32', 'v13', 7, 'v13')
    a.valu('v_lshl_add_u32', 'v13', 'v14', 4, 'v13')
    a.salu('s_lshl_b32', 's9', SWM, 13)
    a.valu('v_add_u32', 'v13', 's9', 'v13')
    XR = 16
    for b in range(NBUF):
        a.valu('v_add_u32', V(XR + 2 * b), b * BUFSZ, 'v13')
        a.valu('v_xor_b32', V(XR + 2 * b + 1), 64, V(XR + 2 * b))
    a.valu('v_lshlrev_b32', 'v13', 9, 'v11')
    a.valu('v_lshl_add_u32', 'v13', 'v12', 6, 'v13')
    a.valu('v_and_b32', 'v14', 1, 'v11')
    a.valu('v_lshl_add_u32', 'v13', 'v14', 5, 'v13')
    a.valu('v_lshl_add_u32', 'v13', 'v15', 3, 'v13')
    WR = 24
    g.wbase(a, 'v13', 'v14', 'v15', SWN)
    for b in range(NBUF):
        a.valu('v_add_u32', V(WR + 2 * b), b * BUFSZ + XB, 'v14')
        a.valu('v_add_u32', V(WR + 2 * b + 1), b * BUFSZ + XB, 'v15')
    a.salu('s_lshl_b32', 's12', SW, 10)
    SWB = 's12'
    a.salu('s_mov_b32', 's13', 0)
    a.salu('s_mov_b32', 's14', 0)
    NACC = TM * NT * 4
    for i in range(NACC):
        a.valu('v_accvgpr_write_b32', A(i), 0)

    FB = 32
    FSZ = (TM + NT) * 4

    def fx(fs, tm):
        return V(FB + fs * FSZ + tm * 4, 4)

    def fw(fs, t, hh=None):
        base = FB + fs * FSZ + TM * 4 + t * 4
        if hh is None:
            return V(base, 4)
        return V(base + 2 * hh, 2)

    def acc(t, tm):
        return A((t * TM + tm) * 4, 4)

    def dma_list(buf):
        out = []
        for j in range(4):
            def f(j=j):
                a.salu('s_add_u32', 'm0', SWB, buf * BUFSZ + j * 4096)
                a.dma(V(4 + j), S(40, 4), 's13')
            out.append(f)
        for cb, (si, coloff) in enumerate(g.wdma):
            def f(cb=cb, si=si, coloff=coloff):
                a.salu('s_add_u32', 'm0', SWB, buf * BUFSZ + XB + cb * 4096 - coloff)
                a.dma('v8', S(44 + 4 * si, 4), 's14', off=coloff)
            out.append(f)

        def adv():
            a.salu('s_add_u32', 's13', 's13', 128)
            a.salu('s_add_u32', 's14', 's14', 64 * g.ldw)
        out.append(adv)
        return out

    def read_list(fs, buf, ks):
        out = []
        for tm in range(TM):
            out.append(lambda tm=tm: a.ds_read('ds_read_b128', fx(fs, tm), V(XR + 2 * buf + ks), tm * 2048))
        for t, (sel, imm) in enumerate(g.tiles):
            for hh in range(2):
                out.append(lambda t=t, sel=sel, imm=imm, hh=hh: a.ds_read(
                    'ds_read_b64_tr_b16', fw(fs, t, hh), V(WR + 2 * buf + sel), imm + ks * 2048 + hh * 256))
        return out

    def mfma_list(fs):
        out = []
        for t in range(NT):
            for tm in range(TM):
                if g.swapped[t]:
                    out.append(lambda t=t, tm=tm: a.mfma('16x16x32', acc(t, tm), fx(fs, tm), fw(fs, t), acc(t, tm)))
                else:
                    out.append(lambda t=t, tm=tm: a.mfma('16x16x32', acc(t, tm), fw(fs, t), fx(fs, tm), acc(t, tm)))
        return out

    for s in range(NBUF):
        for f in dma_list(s):
            f()
    a.waitcnt(vm=P * (NBUF - 1))
    a.barrier()
    for f in read_list(0, 0, 0):
        f()

    def stage(s, last_known):
        buf = s % NBUF
        nxt = (s + 1) % NBUF
        a.waitcnt(lgkm=0)
        interleave(a, mfma_list(0), read_list(1, buf, 1))
        if last_known is not None and last_known == S_ - 1:
            a.waitcnt(lgkm=0)
            for m in mfma_list(1):
                m()
            return
        if last_known is None:
            vm = P * (NBUF - 2)
        else:
            vm = P * (min(S_ - 1, last_known + NBUF - 1) - (last_known + 1))
        a.waitcnt(vm=vm, lgkm=0)
        a.barrier()
        others = read_list(0, nxt, 0)
        if last_known is None or last_known + NBUF <= S_ - 1:
            others = others + dma_list(buf)
        interleave(a, mfma_list(1), others)

    nloop = (S_ - NBUF) // NBUF
    a.salu('s_mov_b32', 's15', nloop)
    a.label(label + '_loop')
    for s in range(NBUF):
        stage(s, None)
    a.salu('s_sub_u32', 's15', 's15', 1)
    a.salu('s_cmp_lg_u32', 's15', 0, nodst=True)
    a.branch('s_cbranch_scc1', label + '_loop')
    for s in range(S_ - NBUF, S_):
        stage(s, s)
    a.nop(12)
    g.epilogue(a, g, acc, TM, SM, SN, SWM, SWN)
    end_kernel(a, label)
    nv = 256 + NACC
    KERNELS.append((label, (NWG, 1, 1), (256, 1, 1), NBUF * BUFSZ, nv, 256, 96))


def wbase_simple(a, l0, e, o, swn):
    a.salu('s_lshl_b32', 's9', swn, 12)
    a.valu('v_add_u32', e, 's9', l0)
    a.valu('v_xor_b32', o, 32, e)


def wbase_gateup(a, l0, e, o, swn):
    a.salu('s_lshl_b32', 's9', swn, 5)
    a.valu('v_xor_b32', e, 's9', l0)
    a.valu('v_xor_b32', o, 32, e)
    a.salu('s_mul_i32', 's9', swn, 3 * 4096)
    a.valu('v_add_u32', e, 's9', e)
    a.salu('s_lshl_b32', 's9', swn, 14)
    a.valu('v_add_u32', o, 's9', o)


def ep_lane_consts(a):
    a.valu('v_and_b32', 'v10', 15, 'v2')
    a.valu('v_lshrrev_b32', 'v11', 4, 'v2')
    a.valu('v_and_b32', 'v12', 1, 'v11')
    a.valu('v_lshlrev_b32', 'v12', 5, 'v12')
    a.valu('v_lshrrev_b32', 'v13', 1, 'v11')
    a.valu('v_lshl_add_u32', 'v12', 'v13', 4, 'v12')


def read_acc(a, dst, accr):
    lo = int(accr[2:].split(':')[0])
    for i in range(4):
        a.valu('v_accvgpr_read_b32', V(dst + i), A(lo + i))


def ep_qkv(a, g, acc, TM, SM, SN, SWM, SWN):
    ep_lane_consts(a)
    a.salu('s_lshl_b32', 's9', SN, 1)
    a.salu('s_add_u32', 's9', 's9', SWN)
    a.salu('s_lshl_b32', 's10', SM, 7)
    a.salu('s_lshl_b32', 's11', SWM, 6)
    a.salu('s_add_u32', 's10', 's10', 's11')
    a.salu('s_lshl_b32', 's11', 's9', 17)
    srd(a, 60, P_WS, WS_Q, 4 * MB)
    srd(a, 64, P_WS, WS_K, 4 * MB)
    srd(a, 68, P_WS, WS_VT, 4 * MB)
    a.valu('v_add_u32', 'v14', 's10', 'v10')
    a.valu('v_lshlrev_b32', 'v14', 6, 'v14')
    a.valu('v_add_u32', 'v14', 'v14', 'v12')
    a.valu('v_add_u32', 'v14', 's11', 'v14')
    a.salu('s_mov_b32', 's12', hexf(32 ** -0.5 * 1.4426950408889634))
    T = 64
    for seg in range(2):
        for tm in range(TM):
            b = T + ((seg * TM + tm) % 4) * 16
            read_acc(a, b, acc(2 * seg, tm))
            read_acc(a, b + 4, acc(2 * seg + 1, tm))
            if seg == 0:
                for i in range(8):
                    a.valu('v_mul_f32', V(b + i), 's12', V(b + i))
            for i in range(4):
                a.valu('v_cvt_pk_bf16_f32', V(b + 8 + i), V(b + 2 * i), V(b + 2 * i + 1))
            a.permlane('v_permlane16_swap_b32', V(b + 8), V(b + 10))
            a.permlane('v_permlane16_swap_b32', V(b + 9), V(b + 11))
            a.buf_store('buffer_store_dwordx4', V(b + 8, 4), 'v14', S(60 + 4 * seg, 4), off=tm * 1024)
    a.salu('s_lshl_b32', 's12', 's10', 6)
    a.salu('s_add_u32', 's12', 's12', 's11')
    a.valu('v_lshrrev_b32', 'v15', 1, 'v11')
    a.valu('v_lshlrev_b32', 'v15', 10, 'v15')
    a.valu('v_lshl_add_u32', 'v15', 'v10', 5, 'v15')
    a.valu('v_and_b32', 'v13', 1, 'v11')
    a.valu('v_lshl_add_u32', 'v15', 'v13', 4, 'v15')
    a.valu('v_add_u32', 'v15', 's12', 'v15')
    n = 0
    for t in range(2):
        for pair in range(TM // 2):
            b = T + (n % 4) * 16
            n += 1
            read_acc(a, b, acc(4 + t, 2 * pair))
            read_acc(a, b + 4, acc(4 + t, 2 * pair + 1))
            for i in range(4):
                a.valu('v_cvt_pk_bf16_f32', V(b + 8 + i), V(b + 2 * i), V(b + 2 * i + 1))
            a.permlane('v_permlane32_swap_b32', V(b + 8), V(b + 10))
            a.permlane('v_permlane32_swap_b32', V(b + 9), V(b + 11))
            a.buf_store('buffer_store_dwordx4', V(b + 8, 4), 'v15', S(68, 4), off=pair * 2048 + t * 512)


def make_ep_resid(res_ptr, res_off, gate_idx, dst_ptr, dst_off):
    def ep(a, g, acc, TM, SM, SN, SWM, SWN):
        ep_lane_consts(a)
        a.salu('s_lshl_b32', 's9', SN, 6)
        a.salu('s_lshl_b32', 's10', SWN, 5)
        a.salu('s_add_u32', 's9', 's9', 's10')
        a.salu('s_lshl_b32', 's10', SM, 7)
        a.salu('s_lshl_b32', 's11', SWM, 6)
        a.salu('s_add_u32', 's10', 's10', 's11')
        srd(a, 60, res_ptr, res_off, 4 * MB)
        srd(a, 64, dst_ptr, dst_off, 4 * MB)
        srd(a, 68, P_WS, WS_MOD, 6144 * 4)
        a.valu('v_add_u32', 'v14', 's10', 'v10')
        a.valu('v_lshlrev_b32', 'v14', 11, 'v14')
        a.salu('s_lshl_b32', 's11', 's9', 1)
        a.valu('v_add_u32', 'v14', 's11', 'v14')
        a.valu('v_lshl_add_u32', 'v15', 'v11', 3, 'v14')
        a.valu('v_add_u32', 'v16', 'v14', 'v12')
        a.salu('s_lshl_b32', 's11', 's9', 2)
        a.salu('s_add_u32', 's11', 's11', gate_idx * 4096)
        a.valu('v_lshlrev_b32', 'v17', 4, 'v11')
        a.buf_load('buffer_load_dwordx4', V(20, 4), 'v17', S(68, 4), 's11')
        a.buf_load('buffer_load_dwordx4', V(24, 4), 'v17', S(68, 4), 's11', off=64)
        for tm in range(TM):
            a.salu('s_mov_b32', 's12', tm * 32768)
            for t in range(2):
                a.buf_load('buffer_load_dwordx2', V(32 + tm * 4 + t * 2, 2), 'v15', S(60, 4), 's12', off=t * 32)
        T = 64
        for tm in range(TM):
            b = T + tm * 24
            read_acc(a, b, acc(0, tm))
            read_acc(a, b + 4, acc(1, tm))
            if tm == 0:
                a.waitcnt(vm=2 * TM)
            for i in range(8):
                bf16_round(a, V(b + i), V(b + i))
                a.valu('v_mul_f32', V(b + i), V(b + i), V(20 + i))
                bf16_round(a, V(b + i), V(b + i))
            a.waitcnt(vm=2 * (TM - 1 - tm) + tm)
            for i in range(4):
                r = V(32 + tm * 4 + i)
                a.valu('v_lshlrev_b32', V(b + 12 + 2 * i), 16, r)
                a.valu('v_and_b32', V(b + 13 + 2 * i), '0xffff0000', r)
            for i in range(8):
                a.valu('v_add_f32', V(b + i), V(b + i), V(b + 12 + i))
            for i in range(4):
                a.valu('v_cvt_pk_bf16_f32', V(b + 8 + i), V(b + 2 * i), V(b + 2 * i + 1))
            a.permlane('v_permlane16_swap_b32', V(b + 8), V(b + 10))
            a.permlane('v_permlane16_swap_b32', V(b + 9), V(b + 11))
            a.salu('s_mov_b32', 's12', tm * 32768)
            a.buf_store('buffer_store_dwordx4', V(b + 8, 4), 'v16', S(64, 4), 's12')
    return ep


def ep_gateup(a, g, acc, TM, SM, SN, SWM, SWN):
    ep_lane_consts(a)
    a.salu('s_mul_i32', 's9', SN, 224)
    a.salu('s_mul_i32', 's10', SWN, 112)
    a.salu('s_add_u32', 's9', 's9', 's10')
    a.salu('s_lshl_b32', 's10', SM, 7)
    a.salu('s_lshl_b32', 's11', SWM, 6)
    a.salu('s_add_u32', 's10', 's10', 's11')
    srd(a, 60, P_WS, WS_HH, 2048 * 7168)
    a.valu('v_add_u32', 'v14', 's10', 'v10')
    a.salu('s_mov_b32', 's11', 7168)
    a.valu('v_mul_lo_u32', 'v14', 'v14', 's11')
    a.salu('s_lshl_b32', 's11', 's9', 1)
    a.valu('v_add_u32', 'v14', 's11', 'v14')
    a.valu('v_lshl_add_u32', 'v15', 'v11', 3, 'v14')
    a.valu('v_add_u32', 'v16', 'v14', 'v12')
    T = 64
    n = 0
    for tm in range(TM):
        a.salu('s_mov_b32', 's12', tm * 16 * 7168)
        for pr in range(4):
            b = T + (n % 4) * 24
            n += 1
            nt = 2 if pr < 3 else 1
            for q in range(nt):
                t = 2 * pr + q
                read_acc(a, b + 4 * q, acc(t, tm))
                read_acc(a, b + 12 + 4 * q, acc(7 + t, tm))
            for i in range(4 * nt):
                bf16_round(a, V(b + i), V(b + i))
                bf16_round(a, V(b + 12 + i), V(b + 12 + i))
                a.valu('v_mul_f32', V(b + i), V(b + i), V(b + 12 + i))
            for i in range(2 * nt):
                a.valu('v_cvt_pk_bf16_f32', V(b + 8 + i), V(b + 2 * i), V(b + 2 * i + 1))
            if nt == 2:
                a.permlane('v_permlane16_swap_b32', V(b + 8), V(b + 10))
                a.permlane('v_permlane16_swap_b32', V(b + 9), V(b + 11))
                a.buf_store('buffer_store_dwordx4', V(b + 8, 4), 'v16', S(60, 4), 's12', off=pr * 64)
            else:
                a.buf_store('buffer_store_dwordx2', V(b + 8, 2), 'v15', S(60, 4), 's12', off=pr * 64)


def gemm_qkv():
    g = Gemm()
    g.label = 'qkv_kernel'
    g.K = 1024
    g.lda = 2048
    g.ldw = 6144
    g.x_ptr, g.x_off = P_WS, WS_H1
    g.nbuf = 2
    g.ncb = 6
    tot = 1024 * 6144
    g.wsrd = [(P_WQKV, 128, seg * 2048, tot) for seg in range(3)]
    g.wdma = [(seg, c * 64) for seg in range(3) for c in range(2)]
    g.tiles = [(t, seg * 8192) for seg in range(3) for t in range(2)]
    g.swapped = [False, False, False, False, True, True]
    g.wbase = wbase_simple
    g.epilogue = ep_qkv
    return g


def gemm_wo():
    g = Gemm()
    g.label = 'wo_kernel'
    g.K = 1024
    g.lda = 2048
    g.ldw = 2048
    g.x_ptr, g.x_off = P_WS, WS_O
    g.nbuf = 4
    g.ncb = 2
    g.wsrd = [(P_WO, 128, 0, 1024 * 2048)]
    g.wdma = [(0, 0), (0, 64)]
    g.tiles = [(0, 0), (1, 0)]
    g.swapped = [False, False]
    g.wbase = wbase_simple
    g.epilogue = make_ep_resid(P_X, 0, 2, P_WS, WS_X1)
    return g


def gemm_gateup():
    g = Gemm()
    g.label = 'gateup_kernel'
    g.K = 1024
    g.lda = 2048
    g.ldw = 7168
    g.x_ptr, g.x_off = P_WS, WS_H2
    g.nbuf = 2
    g.ncb = 14
    tot = 1024 * 7168
    g.wsrd = [(P_WG, 448, 0, tot), (P_WU, 448, 0, tot)]
    g.wdma = [(m, c * 64) for m in range(2) for c in range(7)]
    g.tiles = [(tt & 1, m * 7 * 4096 + (tt >> 1) * 4096) for m in range(2) for tt in range(7)]
    g.swapped = [False] * 14
    g.wbase = wbase_gateup
    g.epilogue = ep_gateup
    return g


def gemm_down():
    g = Gemm()
    g.label = 'down_kernel'
    g.K = 3584
    g.lda = 7168
    g.ldw = 2048
    g.x_ptr, g.x_off = P_WS, WS_HH
    g.nbuf = 4
    g.ncb = 2
    g.wsrd = [(P_WD, 128, 0, 3584 * 2048)]
    g.wdma = [(0, 0), (0, 64)]
    g.tiles = [(0, 0), (1, 0)]
    g.swapped = [False, False]
    g.wbase = wbase_simple
    g.epilogue = make_ep_resid(P_WS, WS_X1, 5, P_OUT, 0)
    return g


def k_attn(a):
    label = 'attn_kernel'
    NWG = 256
    begin_kernel(a, label, NWG)
    a.salu('s_and_b32', 's3', 's2', 7)
    a.salu('s_lshl_b32', 's3', 's3', 2)
    a.salu('s_bfe_u32', 's4', 's2', '0x20003')
    a.salu('s_add_u32', 's3', 's3', 's4')
    a.salu('s_lshr_b32', 's4', 's2', 5)
    a.valu('v_lshrrev_b32', 'v1', 6, 'v0')
    a.readlane('v_readfirstlane_b32', 's6', 'v1')
    a.valu('v_and_b32', 'v2', 63, 'v0')
    a.valu('v_and_b32', 'v3', 31, 'v2')
    a.valu('v_lshrrev_b32', 'v4', 5, 'v2')
    a.waitcnt(lgkm=0)
    a.salu('s_lshl_b32', 's7', 's3', 17)
    a.salu('s_add_u32', 's8', 's7', WS_Q)
    srd(a, 40, P_WS, 's8', 131072)
    a.salu('s_add_u32', 's8', 's7', WS_K)
    srd(a, 44, P_WS, 's8', 131072)
    a.salu('s_add_u32', 's8', 's7', WS_VT)
    srd(a, 48, P_WS, 's8', 131072)
    srd(a, 52, P_WS, WS_O, 4 * MB)
    a.salu('s_lshl_b32', 's8', 's4', 8)
    a.salu('s_lshl_b32', 's9', 's6', 5)
    a.salu('s_add_u32', 's8', 's8', 's9')
    a.valu('v_add_u32', 'v5', 's8', 'v3')
    a.valu('v_lshlrev_b32', 'v6', 6, 'v5')
    a.valu('v_lshl_add_u32', 'v6', 'v4', 4, 'v6')
    QF = 16
    a.buf_load('buffer_load_dwordx4', V(QF, 4), 'v6', S(40, 4))
    a.buf_load('buffer_load_dwordx4', V(QF + 4, 4), 'v6', S(40, 4), off=32)
    a.valu('v_lshrrev_b32', 'v7', 4, 'v2')
    a.valu('v_and_b32', 'v8', 3, 'v2')
    a.valu('v_xor_b32', 'v7', 'v7', 'v8')
    a.valu('v_lshrrev_b32', 'v8', 2, 'v2')
    a.valu('v_lshlrev_b32', 'v8', 6, 'v8')
    a.valu('v_lshl_add_u32', 'v8', 'v7', 4, 'v8')
    a.salu('s_lshl_b32', 's9', 's6', 10)
    a.valu('v_add_u32', 'v8', 's9', 'v8')
    a.valu('v_add_u32', 'v9', 8192, 'v8')
    a.valu('v_lshrrev_b32', 'v10', 4, 'v2')
    a.valu('v_xor_b32', 'v10', 'v10', 'v2')
    a.valu('v_and_b32', 'v10', 1, 'v10')
    a.valu('v_lshrrev_b32', 'v11', 1, 'v2')
    a.valu('v_lshlrev_b32', 'v11', 5, 'v11')
    a.valu('v_lshl_add_u32', 'v10', 'v10', 4, 'v11')
    a.valu('v_add_u32', 'v10', 's9', 'v10')
    a.valu('v_add_u32', 'v11', 8192, 'v10')
    a.valu('v_bfe_u32', 'v12', 'v3', 2, 2)
    a.valu('v_xor_b32', 'v12', 'v12', 'v4')
    a.valu('v_lshlrev_b32', 'v13', 6, 'v3')
    a.valu('v_lshl_add_u32', 'v12', 'v12', 4, 'v13')
    a.valu('v_xor_b32', 'v13', 32, 'v12')
    a.valu('v_bfe_u32', 'v14', 'v3', 3, 1)
    a.valu('v_xor_b32', 'v14', 'v14', 'v4')
    a.valu('v_lshlrev_b32', 'v15', 5, 'v3')
    a.valu('v_lshl_add_u32', 'v14', 'v14', 4, 'v15')
    a.valu('v_add_u32', 'v14', 16384, 'v14')
    KR0, KR1, VR = 'v12', 'v13', 'v14'
    SKOFF = 's10'
    a.salu('s_mov_b32', SKOFF, 0)
    STHR, SFLOOR = 's11', 's12'
    a.salu('s_mov_b32', STHR, '0xff800000')
    a.salu('s_mov_b32', SFLOOR, '0xff800000')

    def dma_stage(buf):
        out = []
        for i, vo in enumerate(('v8', 'v9')):
            def f(i=i, vo=vo):
                a.salu('s_add_u32', 'm0', 's9', buf * 32768 + i * 8192)
                a.dma(vo, S(44, 4), SKOFF)
            out.append(f)
        for i, vo in enumerate(('v10', 'v11')):
            def f(i=i, vo=vo):
                a.salu('s_add_u32', 'm0', 's9', buf * 32768 + 16384 + i * 8192)
                a.dma(vo, S(48, 4), SKOFF)
            out.append(f)
        out.append(lambda: a.salu('s_add_u32', SKOFF, SKOFF, 16384))
        return out

    KF = 24
    VF = 40
    ONE = 56
    PB = 60
    OA = 76
    LA = 92
    CM = 108
    SS = 124
    TMP = 188
    for i in range(4):
        a.valu('v_mov_b32', V(ONE + i), '0x3f803f80')
    for i in range(16):
        a.valu('v_mov_b32', V(OA + i), 0)
        a.valu('v_mov_b32', V(LA + i), 0)
        a.valu('v_mov_b32', V(CM + i), 0)

    def k_reads(buf, it):
        out = []
        for kt in range(2):
            for st in range(2):
                out.append(lambda kt=kt, st=st: a.ds_read('ds_read_b128', V(KF + kt * 8 + st * 4, 4),
                                                          (KR0, KR1)[st], buf * 32768 + (it * 2 + kt) * 2048))
        return out

    def v_reads(buf, it):
        return [lambda u=u: a.ds_read('ds_read_b128', V(VF + u * 4, 4), VR, buf * 32768 + (it * 4 + u) * 1024)
                for u in range(4)]

    def s_mfmas(ss):
        out = []
        for kt in range(2):
            d = V(SS + ss * 32 + kt * 16, 16)
            out.append(lambda kt=kt, d=d: a.mfma('32x32x16', d, V(KF + kt * 8, 4), V(QF, 4), V(CM, 16)))
            out.append(lambda kt=kt, d=d: a.mfma('32x32x16', d, V(KF + kt * 8 + 4, 4), V(QF + 4, 4), d))
        return out

    for f in dma_stage(0):
        f()
    for f in dma_stage(1):
        f()
    a.waitcnt(vm=4)
    a.barrier()
    for f in k_reads(0, 0):
        f()
    for f in v_reads(0, 0):
        f()
    a.waitcnt(lgkm=4)
    for f in s_mfmas(0):
        f()

    rare_id = [0]

    def iteration(buf, it, ss, tail_stage, last):
        sb = SS + ss * 32
        if it == 3:
            nbuf, nit = buf ^ 1, 0
        else:
            nbuf, nit = buf, it + 1
        if it == 3 and not last:
            a.waitcnt(vm=0, lgkm=0)
            a.barrier()
            if not tail_stage:
                for f in dma_stage(buf):
                    f()
        if not last:
            for f in k_reads(nbuf, nit):
                f()
        a.valu('v_max3_f32', V(TMP), V(sb), V(sb + 1), V(sb + 2))
        a.valu('v_max3_f32', V(TMP + 1), V(sb + 3), V(sb + 4), V(sb + 5))
        k = 6
        while k < 32:
            a.valu('v_max3_f32', V(TMP), V(TMP), V(sb + k), V(sb + k + 1))
            if k + 3 < 32:
                a.valu('v_max3_f32', V(TMP + 1), V(TMP + 1), V(sb + k + 2), V(sb + k + 3))
            k += 4
        a.valu('v_max_f32', V(TMP), V(TMP), V(TMP + 1))
        a.valu('v_cmp_lt_f32', 'vcc', STHR, V(TMP))
        rid = rare_id[0]
        rare_id[0] += 1
        a.nop(1)
        a.branch('s_cbranch_vccnz', 'attn_rare%d' % rid)
        a.label('attn_back%d' % rid)
        rare_blocks.append((rid, sb))
        ex = []
        for i in range(32):
            ex.append(lambda i=i: a.valu('v_exp_f32', V(sb + i), V(sb + i)))
            if i % 2 == 1:
                ex.append(lambda i=i: a.valu('v_cvt_pk_bf16_f32', V(PB + i // 2), V(sb + i - 1), V(sb + i)))
        if not last:
            a.waitcnt(lgkm=0)
            interleave(a, s_mfmas(ss ^ 1), ex[:24])
            rest = ex[24:]
        else:
            a.waitcnt(lgkm=0)
            rest = ex
        pv = []
        for u in range(4):
            pv.append(lambda u=u: a.mfma('32x32x16', V(OA, 16), V(VF + u * 4, 4), V(PB + u * 4, 4), V(OA, 16)))
            pv.append(lambda u=u: a.mfma('32x32x16', V(LA, 16), V(ONE, 4), V(PB + u * 4, 4), V(LA, 16)))
        for f in rest[:len(rest) - 24 if last else 0]:
            f()
        rest2 = rest[len(rest) - 24:] if last else rest
        interleave(a, pv[:4], rest2)
        for f in pv[4:]:
            f()
        if not last:
            for f in v_reads(nbuf, nit):
                f()

    rare_blocks = []
    a.salu('s_mov_b32', 's13', 3)
    a.label('attn_loop')
    a.loop_guard()
    for buf in range(2):
        for it in range(4):
            iteration(buf, it, it & 1, False, False)
    a.salu('s_sub_u32', 's13', 's13', 1)
    a.salu('s_cmp_lg_u32', 's13', 0, nodst=True)
    a.branch('s_cbranch_scc1', 'attn_loop')
    a.loop_guard()
    for buf in range(2):
        for it in range(4):
            iteration(buf, it, it & 1, True, buf == 1 and it == 3)
    a.nop(16)
    a.valu('v_rcp_f32', V(TMP), V(LA))
    for i in range(16):
        a.valu('v_mul_f32', V(OA + i), V(OA + i), V(TMP))
    for i in range(8):
        a.valu('v_cvt_pk_bf16_f32', V(PB + i), V(OA + 2 * i), V(OA + 2 * i + 1))
    a.valu('v_lshlrev_b32', 'v6', 11, 'v5')
    a.salu('s_lshl_b32', 's8', 's3', 6)
    a.valu('v_add_u32', 'v6', 's8', 'v6')
    a.valu('v_lshl_add_u32', 'v6', 'v4', 4, 'v6')
    for pr in range(2):
        b = PB + 4 * pr
        a.permlane('v_permlane32_swap_b32', V(b), V(b + 2))
        a.permlane('v_permlane32_swap_b32', V(b + 1), V(b + 3))
        a.buf_store('buffer_store_dwordx4', V(b, 4), 'v6', S(52, 4), off=pr * 32)
    a.other('s_endpgm')
    for rid, sb in rare_blocks:
        a.label('attn_rare%d' % rid)
        a.reset_hist()
        a.nop(16)
        a.valu('v_mov_b32', V(TMP + 1), V(TMP))
        a.valu('v_mov_b32', V(TMP + 2), V(TMP))
        a.permlane('v_permlane32_swap_b32', V(TMP + 1), V(TMP + 2))
        a.valu('v_max_f32', V(TMP), V(TMP + 1), V(TMP + 2))
        a.valu('v_max_f32', V(TMP), SFLOOR, V(TMP))
        a.valu('v_sub_f32', V(TMP + 1), 0, V(TMP))
        a.valu('v_exp_f32', V(TMP + 1), V(TMP + 1))
        for i in range(16):
            a.valu('v_mul_f32', V(OA + i), V(OA + i), V(TMP + 1))
            a.valu('v_mul_f32', V(LA + i), V(LA + i), V(TMP + 1))
            a.valu('v_sub_f32', V(CM + i), V(CM + i), V(TMP))
        for i in range(32):
            a.valu('v_sub_f32', V(sb + i), V(sb + i), V(TMP))
        a.salu('s_mov_b32', STHR, hexf(8.0))
        a.salu('s_mov_b32', SFLOOR, 0)
        a.nop(4)
        a.branch('s_branch', 'attn_back%d' % rid)
    end_kernel(a, label)
    KERNELS.append((label, (NWG, 1, 1), (512, 1, 1), 65536, 200, 200, 64))


def build(only=None):
    a = Asm()
    k_mod(a)
    k_ln(a, 'ln1_kernel', P_X, 0, WS_H1, 0, 1)
    k_gemm(a, gemm_qkv())
    k_attn(a)
    k_gemm(a, gemm_wo())
    k_ln(a, 'ln2_kernel', P_WS, WS_X1, WS_H2, 3, 4)
    k_gemm(a, gemm_gateup())
    k_gemm(a, gemm_down())
    hdr = []
    ref = open('cdna_kernels/%s.s.ref' % NAME).read().splitlines()
    for ln in ref:
        if ln.startswith(';') and '@launch' not in ln and 'launch geometry' not in ln and 'grid=ceil' not in ln:
            hdr.append(ln)
    for (label, grid, block, lds, nv, ao, ns) in KERNELS:
        if only is not None and label not in only:
            continue
        hdr.append('; @launch kernel=%s grid=(%d,%d,%d) block=(%d,%d,%d) lds=%d' % ((label,) + grid + block + (lds,)))
    out = '\n'.join(hdr) + '\n'
    out += '.amdgcn_target "amdgcn-amd-amdhsa--gfx950"\n.text\n'
    out += a.text()
    out += '.section .rodata,"a"\n'
    for (label, grid, block, lds, nv, ao, ns) in KERNELS:
        out += '.p2align 6\n.amdhsa_kernel %s\n' % label
        out += '  .amdhsa_next_free_vgpr %d\n' % nv
        out += '  .amdhsa_next_free_sgpr %d\n' % ns
        out += '  .amdhsa_accum_offset %d\n' % ao
        out += '  .amdhsa_group_segment_fixed_size 0\n'
        out += '  .amdhsa_kernarg_size 96\n'
        out += '  .amdhsa_user_sgpr_count 2\n'
        out += '  .amdhsa_user_sgpr_kernarg_segment_ptr 1\n'
        out += '  .amdhsa_system_sgpr_workgroup_id_x 1\n'
        out += '  .amdhsa_float_denorm_mode_32 3\n'
        out += '  .amdhsa_float_denorm_mode_16_64 3\n'
        out += '.end_amdhsa_kernel\n'
    return out


if __name__ == '__main__':
    dst = sys.argv[1] if len(sys.argv) > 1 else 'cdna_kernels/%s.s' % NAME
    open(dst, 'w').write(build())
    print('wrote', dst)
```

```python
import re

_RANGE = re.compile(r'^([vas])\[(\d+):(\d+)\]$')
_SINGLE = re.compile(r'^([vas])(\d+)$')


def regs_of(op):
    if not isinstance(op, str):
        return set()
    o = op.strip()
    neg = False
    if o.startswith('-'):
        o = o[1:]
    if o.startswith('abs(') and o.endswith(')'):
        o = o[4:-1]
    m = _RANGE.match(o)
    if m:
        return {(m.group(1), i) for i in range(int(m.group(2)), int(m.group(3)) + 1)}
    m = _SINGLE.match(o)
    if m:
        return {(m.group(1), int(m.group(2)))}
    if o in ('vcc', 'exec', 'm0', 'scc'):
        return {(o, 0)}
    return set()


def R(cls, lo, n=1):
    if n == 1:
        return '%s%d' % (cls, lo)
    return '%s[%d:%d]' % (cls, lo, lo + n - 1)


def V(lo, n=1):
    return R('v', lo, n)


def A(lo, n=1):
    return R('a', lo, n)


def S(lo, n=1):
    return R('s', lo, n)


TRANS = ('v_exp_f32', 'v_log_f32', 'v_rcp_f32', 'v_rsq_f32', 'v_sqrt_f32', 'v_sin_f32', 'v_cos_f32')


class Ins:
    __slots__ = ('text', 'cls', 'w', 'r', 'c', 'states', 'wide_data', 'passes', 'dpp', 'mn')


class Asm:
    def __init__(self):
        self.lines = []
        self.hist = []
        self.nops_inserted = 0
        self.abl = ''

    def raw(self, text):
        self.lines.append(text)

    def comment(self, text):
        self.lines.append('    ; ' + text)

    def label(self, name):
        self.lines.append(name + ':')

    def reset_hist(self):
        self.hist = []

    def loop_guard(self):
        self.nop(16)

    def nop(self, n):
        while n > 0:
            k = min(n, 16)
            self._push('s_nop %d' % (k - 1), 'nop', set(), set(), states=k)
            n -= k

    def _push(self, text, cls, w, r, c=frozenset(), states=1, wide=frozenset(), passes=0, dpp=False, mn=''):
        ins = Ins()
        ins.text = text
        ins.cls = cls
        ins.w = w
        ins.r = r
        ins.c = c
        ins.states = states
        ins.wide_data = wide
        ins.passes = passes
        ins.dpp = dpp
        ins.mn = mn
        self.hist.append(ins)
        if len(self.hist) > 64:
            self.hist.pop(0)
        self.lines.append('    ' + text)

    def _need(self, cls, w, r, c, passes, dpp, mn):
        need = 0
        dist = 0
        isvalu = cls in ('valu', 'trans', 'permlane', 'readlane')
        for p in reversed(self.hist):
            if dist >= 24:
                break
            req = 0
            pw = p.w
            if p.cls in ('valu', 'trans', 'permlane', 'readlane'):
                vw = {x for x in pw if x[0] in 'va'}
                sw = {x for x in pw if x[0] in ('s', 'vcc')}
                if cls == 'mfma' and (vw & (r | c)):
                    req = max(req, 2)
                if p.cls == 'trans' and isvalu and cls != 'trans' and (vw & r):
                    req = max(req, 1)
                if sw:
                    if isvalu and (sw & r):
                        req = max(req, 4 if cls == 'readlane' else 2)
                    if cls in ('vmem', 'dma') and (sw & r):
                        req = max(req, 5)
                if cls == 'readlane' and (vw & r):
                    req = max(req, 1)
                if cls == 'permlane' and (vw & r):
                    req = max(req, 2)
                if dpp and (vw & r):
                    req = max(req, 2)
                if ('exec', 0) in pw:
                    req = max(req, 5)
            if p.cls == 'mfma':
                big = 8 if p.passes == 4 else 12
                d = pw
                if cls == 'mfma':
                    if d & r:
                        req = max(req, big)
                    if d & c:
                        if not (d == c and passes == p.passes):
                            req = max(req, 6 if p.passes == 4 else 10)
                    if (d & w) and not (d == w and d == c and passes == p.passes):
                        req = max(req, big)
                elif cls in ('valu', 'trans', 'permlane', 'readlane', 'vmem', 'ds', 'dma'):
                    if (d & r) or (d & w):
                        req = max(req, big)
                if isvalu and (p.c & w):
                    req = max(req, 3 if p.passes == 4 else 7)
            if p.cls == 'salu' and ('m0', 0) in pw and cls == 'dma':
                req = max(req, 1)
            if p.wide_data:
                if isvalu and (p.wide_data & w):
                    req = max(req, 2)
                elif (p.wide_data & w):
                    req = max(req, 1)
            if req > dist:
                need = max(need, req - dist)
            dist += p.states
        return need

    def emit(self, mn, ops, cls, w, r, c=frozenset(), mods='', wide=frozenset(), passes=0, dpp=False):
        n = self._need(cls, w, r, c, passes, dpp, mn)
        if n:
            self.nops_inserted += n
            self.nop(n)
        text = mn + ' ' + ', '.join(str(o) for o in ops)
        if mods:
            text += ' ' + mods
        self._push(text.strip(), cls, w, r, c, 1, wide, passes, dpp, mn)

    def valu(self, mn, dst, *srcs, mods='', dpp=False):
        if 'noexp' in self.abl and mn == 'v_exp_f32':
            return
        if 'nomax' in self.abl and mn == 'v_max3_f32':
            return
        if 'nocvt' in self.abl and mn == 'v_cvt_pk_bf16_f32':
            return
        w = regs_of(dst)
        r = set()
        for s_ in srcs:
            r |= regs_of(s_)
        if mn.startswith('v_fmac') or mn.startswith('v_pk_fmac'):
            r |= w
        if mn.startswith('v_cndmask') and len(srcs) == 2:
            r |= {('vcc', 0)}
            srcs = srcs + ('vcc',)
            r |= {('vcc', 0)}
        cls = 'trans' if mn in TRANS else 'valu'
        self.emit(mn, (dst,) + srcs, cls, w, r, mods=mods, dpp=dpp)

    def permlane(self, mn, a, b):
        w = regs_of(a) | regs_of(b)
        self.emit(mn, (a, b), 'permlane', w, set(w))

    def readlane(self, mn, sdst, *srcs):
        r = set()
        for s_ in srcs:
            r |= regs_of(s_)
        self.emit(mn, (sdst,) + srcs, 'readlane', regs_of(sdst), r)

    def salu(self, mn, *ops, nodst=False):
        if nodst:
            w = {('scc', 0)}
            r = set()
            for o in ops:
                r |= regs_of(o)
        else:
            w = regs_of(ops[0]) | {('scc', 0)}
            r = set()
            for o in ops[1:]:
                r |= regs_of(o)
        self.emit(mn, ops, 'salu', w, r)

    def smem(self, mn, dst, base, off):
        self.emit(mn, (dst, base, off), 'smem', regs_of(dst), regs_of(base))

    def mfma(self, shape, d, a, b, c):
        if 'nomfma' in self.abl:
            return
        passes = 4 if shape.startswith('16x16x32') else 8
        mn = 'v_mfma_f32_%s_bf16' % shape
        cc = regs_of(c)
        self.emit(mn, (d, a, b, c), 'mfma', regs_of(d), regs_of(a) | regs_of(b), cc, passes=passes)

    def ds_read(self, mn, dst, addr, off=0):
        if 'noread' in self.abl:
            return
        mods = ('offset:%d' % off) if off else ''
        assert 0 <= off < 65536, off
        self.emit(mn, (dst, addr), 'ds', regs_of(dst), regs_of(addr), mods=mods)

    def ds_write(self, mn, addr, data, off=0):
        mods = ('offset:%d' % off) if off else ''
        assert 0 <= off < 65536, off
        self.emit(mn, (addr, data), 'ds', set(), regs_of(addr) | regs_of(data), mods=mods)

    def buf_load(self, mn, dst, voff, srd, soff='0', off=0, extra=''):
        mods = 'offen' + ((' offset:%d' % off) if off else '') + ((' ' + extra) if extra else '')
        assert 0 <= off < 4096, off
        self.emit(mn, (dst, voff, srd, soff), 'vmem', regs_of(dst),
                  regs_of(voff) | regs_of(srd) | regs_of(soff), mods=mods)

    def buf_store(self, mn, data, voff, srd, soff='0', off=0, extra=''):
        mods = 'offen' + ((' offset:%d' % off) if off else '') + ((' ' + extra) if extra else '')
        assert 0 <= off < 4096, off
        d = regs_of(data)
        wide = d if len(d) >= 3 else frozenset()
        self.emit(mn, (data, voff, srd, soff), 'vmem', set(),
                  d | regs_of(voff) | regs_of(srd) | regs_of(soff), mods=mods, wide=wide)

    def dma(self, voff, srd, soff='0', off=0):
        if 'nodma' in self.abl:
            return
        mods = 'offen' + ((' offset:%d' % off) if off else '') + ' lds'
        assert 0 <= off < 4096, off
        self.emit('buffer_load_dwordx4', (voff, srd, soff), 'dma', set(),
                  regs_of(voff) | regs_of(srd) | regs_of(soff) | {('m0', 0)}, mods=mods)

    def waitcnt(self, vm=None, lgkm=None):
        t = []
        if vm is not None:
            assert 0 <= vm < 64
            t.append('vmcnt(%d)' % vm)
        if lgkm is not None:
            assert 0 <= lgkm < 16
            t.append('lgkmcnt(%d)' % lgkm)
        self._push('s_waitcnt ' + ' '.join(t), 'other', set(), set())

    def other(self, text):
        self._push(text, 'other', set(), set())

    def barrier(self):
        if 'nobar' in self.abl:
            return
        self.other('s_barrier')

    def branch(self, mn, label):
        self.other('%s %s' % (mn, label))

    def text(self):
        return '\n'.join(self.lines) + '\n'
```

```python
import math
import struct
import sys
import os

sys.path.insert(0, os.path.dirname(os.path.abspath(__file__)))
from asmlib import Asm, V, A, S

NAME = 'adaLN_cond__mha_block__glu_gated_bilinear__prompt'

MB = 1 << 20
WS_MOD = 0
WS_H1 = 1 * MB
WS_Q = 8 * MB
WS_K = 12 * MB
WS_VT = 16 * MB
WS_O = 20 * MB
WS_X1 = 24 * MB
WS_H2 = 28 * MB
WS_HH = 32 * MB

P_X, P_WQKV, P_WO, P_BX, P_WG, P_WU, P_WD, P_C, P_WMOD, P_OUT, P_DBG, P_WS = [16 + 2 * i for i in range(12)]


def f32bits(x):
    return struct.unpack('<I', struct.pack('<f', x))[0]


def hexf(x):
    return '0x%08x' % f32bits(x)


KERNELS = []


def begin_kernel(a, label, nwg):
    a.raw('.p2align 8')
    a.raw('.globl %s' % label)
    a.raw('.type %s,@function' % label)
    a.raw(label + ':')
    a.reset_hist()
    a.salu('s_cmp_ge_u32', 's2', nwg, nodst=True)
    a.branch('s_cbranch_scc1', label + '_end')
    a.smem('s_load_dwordx16', S(16, 16), S(0, 2), 0)
    a.smem('s_load_dwordx8', S(32, 8), S(0, 2), 64)


def end_kernel(a, label):
    a.label(label + '_end')
    a.other('s_endpgm')


def srd(a, d, ptr, off, nbytes):
    a.salu('s_add_u32', S(d), S(ptr), off)
    a.salu('s_addc_u32', S(d + 1), S(ptr + 1), 0)
    a.salu('s_and_b32', S(d + 1), S(d + 1), '0xffff')
    a.salu('s_mov_b32', S(d + 2), nbytes)
    a.salu('s_mov_b32', S(d + 3), '0x00020000')


def bf16_round(a, dst, src):
    a.valu('v_cvt_pk_bf16_f32', dst, src, src)
    a.valu('v_and_b32', dst, '0xffff0000', dst)


def touch_weights(a, gw_vreg, lane_vreg, mats, srd0, tmp0):
    for i, (ptr, nbytes, n) in enumerate(mats):
        d = srd0 + 4 * i
        srd(a, d, ptr, 0, nbytes)
        a.salu('s_mul_i32', 's77', gw_vreg, n * 128)
        a.valu('v_lshlrev_b32', V(tmp0), 7, lane_vreg)
        a.valu('v_add_u32', V(tmp0), 's77', V(tmp0))
        a.valu('v_cmp_gt_u32', 'vcc', n, lane_vreg)
        a.valu('v_mov_b32', V(tmp0 + 1), '0x7f000000')
        a.valu('v_cndmask_b32', V(tmp0), V(tmp0 + 1), V(tmp0))
        a.buf_load('buffer_load_dword', V(tmp0 + 2), V(tmp0), S(d, 4))


def k_mod(a):
    label = 'mod_kernel'
    NWG = 192
    begin_kernel(a, label, NWG)
    a.salu('s_and_b32', 's3', 's2', 7)
    a.salu('s_mul_i32', 's3', 's3', 24)
    a.salu('s_lshr_b32', 's4', 's2', 3)
    a.salu('s_add_u32', 's3', 's3', 's4')
    a.waitcnt(lgkm=0)
    srd(a, 40, P_C, 0, 2048)
    srd(a, 44, P_WMOD, 0, 1024 * 12288)
    srd(a, 48, P_WS, WS_MOD, 6144 * 4)
    a.valu('v_lshlrev_b32', 'v1', 3, 'v0')
    a.buf_load('buffer_load_dwordx2', V(2, 2), 'v1', S(40, 4))
    a.valu('v_lshrrev_b32', 'v4', 2, 'v0')
    a.valu('v_and_b32', 'v5', 3, 'v0')
    a.salu('s_mov_b32', 's5', 12288)
    a.valu('v_mul_lo_u32', 'v6', 'v4', 's5')
    a.valu('v_lshlrev_b32', 'v7', 4, 'v5')
    a.valu('v_add_u32', 'v6', 'v6', 'v7')
    a.salu('s_lshl_b32', 's6', 's3', 6)
    for p in range(16):
        a.salu('s_add_u32', 's7', 's6', p * 64 * 12288)
        a.buf_load('buffer_load_dwordx4', V(64 + 4 * p, 4), 'v6', S(44, 4), 's7')
    a.waitcnt(vm=16)
    a.valu('v_lshlrev_b32', 'v8', 16, 'v2')
    a.valu('v_and_b32', 'v9', '0xffff0000', 'v2')
    a.valu('v_lshlrev_b32', 'v10', 16, 'v3')
    a.valu('v_and_b32', 'v11', '0xffff0000', 'v3')
    a.salu('s_mov_b32', 's8', hexf(-1.4426950408889634))
    for i in range(4):
        a.valu('v_mul_f32', V(12 + i), 's8', V(8 + i))
    for i in range(4):
        a.valu('v_exp_f32', V(12 + i), V(12 + i))
    for i in range(4):
        a.valu('v_add_f32', V(12 + i), '1.0', V(12 + i))
    for i in range(4):
        a.valu('v_rcp_f32', V(12 + i), V(12 + i))
    for i in range(4):
        a.valu('v_mul_f32', V(12 + i), V(8 + i), V(12 + i))
    for i in range(4):
        bf16_round(a, V(12 + i), V(12 + i))
    a.valu('v_lshlrev_b32', 'v16', 4, 'v0')
    a.ds_write('ds_write_b128', 'v16', V(12, 4))
    a.waitcnt(lgkm=0)
    a.barrier()
    a.valu('v_lshlrev_b32', 'v17', 2, 'v4')
    for p in range(16):
        a.ds_read('ds_read_b32', V(24 + p), 'v17', p * 256)
    for j in range(8):
        a.valu('v_mov_b32', V(40 + j), 0)
    a.waitcnt(vm=0, lgkm=0)
    for p in range(16):
        for d in range(4):
            src = V(64 + 4 * p + d)
            a.valu('v_lshlrev_b32', 'v48', 16, src)
            a.valu('v_and_b32', 'v49', '0xffff0000', src)
            a.valu('v_fmac_f32', V(40 + 2 * d), V(24 + p), 'v48')
            a.valu('v_fmac_f32', V(41 + 2 * d), V(24 + p), 'v49')
    a.valu('v_lshlrev_b32', 'v18', 5, 'v0')
    a.ds_write('ds_write_b128', 'v18', V(40, 4), 4096)
    a.ds_write('ds_write_b128', 'v18', V(44, 4), 4096 + 16)
    a.waitcnt(lgkm=0)
    a.barrier()
    a.valu('v_and_b32', 'v19', 31, 'v0')
    a.valu('v_lshrrev_b32', 'v20', 5, 'v0')
    a.valu('v_lshlrev_b32', 'v21', 10, 'v20')
    a.valu('v_lshl_add_u32', 'v21', 'v19', 2, 'v21')
    for i in range(8):
        a.ds_read('ds_read_b32', V(24 + i), 'v21', 4096 + i * 128)
    a.waitcnt(lgkm=0)
    for i in range(1, 8):
        a.valu('v_add_f32', 'v24', 'v24', V(24 + i))
    a.valu('v_lshlrev_b32', 'v22', 2, 'v0')
    a.ds_write('ds_write_b32', 'v22', 'v24', 12288)
    a.waitcnt(lgkm=0)
    a.barrier()
    a.valu('v_lshlrev_b32', 'v22', 2, 'v19')
    for i in range(8):
        a.ds_read('ds_read_b32', V(24 + i), 'v22', 12288 + i * 128)
    a.waitcnt(lgkm=0)
    for i in range(1, 8):
        a.valu('v_add_f32', 'v24', 'v24', V(24 + i))
    bf16_round(a, 'v24', 'v24')
    a.salu('s_lshr_b32', 's9', 's3', 5)
    a.salu('s_cmp_eq_u32', 's9', 1, nodst=True)
    a.branch('s_cbranch_scc1', 'mod_plus1')
    a.salu('s_cmp_eq_u32', 's9', 4, nodst=True)
    a.branch('s_cbranch_scc0', 'mod_store')
    a.label('mod_plus1')
    a.nop(2)
    a.valu('v_add_f32', 'v24', '1.0', 'v24')
    bf16_round(a, 'v24', 'v24')
    a.label('mod_store')
    a.nop(2)
    a.valu('v_cmp_gt_u32', 'vcc', 32, 'v0')
    a.salu('s_and_saveexec_b64', S(10, 2), 'vcc')
    a.branch('s_cbranch_execz', label + '_end')
    a.salu('s_lshl_b32', 's9', 's3', 7)
    a.valu('v_lshlrev_b32', 'v22', 2, 'v0')
    a.buf_store('buffer_store_dword', 'v24', 'v22', S(48, 4), 's9')
    end_kernel(a, label)
    KERNELS.append((label, (NWG, 1, 1), (256, 1, 1), 16384, 128, 128, 96))


def wave_sum(a, v, tmp, sbase):
    a.valu('v_add_f32', tmp, v, v, mods='quad_perm:[1,0,3,2] row_mask:0xf bank_mask:0xf', dpp=True)
    a.valu('v_add_f32', v, tmp, tmp, mods='quad_perm:[2,3,0,1] row_mask:0xf bank_mask:0xf', dpp=True)
    a.valu('v_add_f32', tmp, v, v, mods='row_half_mirror row_mask:0xf bank_mask:0xf', dpp=True)
    a.valu('v_add_f32', v, tmp, tmp, mods='row_mirror row_mask:0xf bank_mask:0xf', dpp=True)
    for i in range(4):
        a.readlane('v_readlane_b32', S(sbase + i), v, 16 * i)
    a.valu('v_mov_b32', v, S(sbase))
    for i in range(1, 4):
        a.valu('v_add_f32', v, S(sbase + i), v)


def k_ln(a, label, src_ptr, src_off, dst_off, shift_idx, scale_idx, touch=None):
    NWG = 512
    begin_kernel(a, label, NWG)
    a.valu('v_lshrrev_b32', 'v1', 6, 'v0')
    a.valu('v_and_b32', 'v2', 63, 'v0')
    a.salu('s_lshl_b32', 's3', 's2', 2)
    a.valu('v_add_u32', 'v1', 's3', 'v1')
    a.valu('v_lshlrev_b32', 'v3', 11, 'v1')
    a.valu('v_lshl_add_u32', 'v3', 'v2', 4, 'v3')
    a.valu('v_lshlrev_b32', 'v4', 5, 'v2')
    a.waitcnt(lgkm=0)
    srd(a, 40, src_ptr, src_off, 2048 * 2048)
    srd(a, 44, P_WS, dst_off, 2048 * 2048)
    srd(a, 48, P_WS, WS_MOD, 6144 * 4)
    a.buf_load('buffer_load_dwordx4', V(8, 4), 'v3', S(40, 4))
    a.buf_load('buffer_load_dwordx4', V(12, 4), 'v3', S(40, 4), off=1024)
    a.salu('s_mov_b32', 's4', scale_idx * 4096)
    a.salu('s_mov_b32', 's5', shift_idx * 4096)
    for h in range(2):
        for q in range(2):
            a.buf_load('buffer_load_dwordx4', V(64 + 8 * h + 4 * q, 4), 'v4', S(48, 4), 's4', off=h * 2048 + q * 16)
    for h in range(2):
        for q in range(2):
            a.buf_load('buffer_load_dwordx4', V(80 + 8 * h + 4 * q, 4), 'v4', S(48, 4), 's5', off=h * 2048 + q * 16)
    extra = 0
    if touch:
        a.valu('v_lshrrev_b32', 'v40', 6, 'v0')
        a.readlane('v_readfirstlane_b32', 's78', 'v40')
        a.salu('s_lshl_b32', 's79', 's2', 2)
        a.salu('s_add_u32', 's78', 's78', 's79')
        touch_weights(a, 's78', 'v2', touch, 52, 40)
        extra = len(touch)
    a.waitcnt(vm=8 + extra)
    for d in range(8):
        a.valu('v_lshlrev_b32', V(16 + 2 * d), 16, V(8 + d))
        a.valu('v_and_b32', V(17 + 2 * d), '0xffff0000', V(8 + d))
    a.valu('v_add_f32', 'v32', 'v16', 'v17')
    for i in range(2, 16):
        a.valu('v_add_f32', 'v32', 'v32', V(16 + i))
    wave_sum(a, 'v32', 'v33', 8)
    a.valu('v_mul_f32', 'v32', hexf(1.0 / 1024), 'v32')
    a.valu('v_sub_f32', 'v34', 'v16', 'v32')
    a.valu('v_mul_f32', 'v35', 'v34', 'v34')
    for i in range(1, 16):
        a.valu('v_sub_f32', 'v34', V(16 + i), 'v32')
        a.valu('v_fmac_f32', 'v35', 'v34', 'v34')
    wave_sum(a, 'v35', 'v33', 8)
    a.valu('v_mul_f32', 'v35', hexf(1.0 / 1024), 'v35')
    bf16_round(a, 'v32', 'v32')
    bf16_round(a, 'v35', 'v35')
    a.valu('v_add_f32', 'v35', hexf(1e-5), 'v35')
    bf16_round(a, 'v35', 'v35')
    a.valu('v_sqrt_f32', 'v35', 'v35')
    bf16_round(a, 'v35', 'v35')
    a.valu('v_rcp_f32', 'v36', 'v35')
    a.waitcnt(vm=extra)
    for i in range(16):
        x = V(16 + i)
        a.valu('v_sub_f32', x, x, 'v32')
        bf16_round(a, x, x)
        a.valu('v_mul_f32', x, x, 'v36')
        bf16_round(a, x, x)
        a.valu('v_mul_f32', x, x, V(64 + i))
        bf16_round(a, x, x)
        a.valu('v_add_f32', x, x, V(80 + i))
    for d in range(8):
        a.valu('v_cvt_pk_bf16_f32', V(8 + d), V(16 + 2 * d), V(17 + 2 * d))
    a.buf_store('buffer_store_dwordx4', V(8, 4), 'v3', S(44, 4))
    a.buf_store('buffer_store_dwordx4', V(12, 4), 'v3', S(44, 4), off=1024)
    end_kernel(a, label)
    KERNELS.append((label, (NWG, 1, 1), (256, 1, 1), 0, 96, 96, 96))


class Gemm:
    pass


STAMP = os.environ.get('STAMP', '')
stamp_n = [0]


def stamp(a, vreg='v31'):
    if not STAMP:
        return
    a.other('s_memtime s[80:81]')
    a.waitcnt(lgkm=0)
    a.valu('v_writelane_b32', vreg, 's80', stamp_n[0])
    stamp_n[0] += 1


def stamp_dump(a, wg, vreg='v31'):
    if not STAMP:
        return
    a.salu('s_cmp_lg_u32', 's2', wg, nodst=True)
    a.branch('s_cbranch_scc1', 'sd%d' % id(stamp_n) + '_%d' % stamp_n[0] + '_%d' % len(a.lines))
    lb = 'sd%d' % id(stamp_n) + '_%d' % stamp_n[0] + '_%d' % (len(a.lines) - 1)
    a.valu('v_cmp_gt_u32', 'vcc', 64, 'v0')
    a.salu('s_and_saveexec_b64', S(82, 2), 'vcc')
    a.branch('s_cbranch_execz', lb)
    srd(a, 84, P_DBG, 0, 256)
    a.valu('v_lshlrev_b32', 'v30', 2, 'v0')
    a.buf_store('buffer_store_dword', vreg, 'v30', S(84, 4))
    a.label(lb)
    a.salu('s_mov_b64', 'exec', -1)
    stamp_n[0] = 0


ABL = os.environ.get('ABL', '')


def interleave(a, mf, others, front=0):
    n = len(mf)
    fr = others[:front]
    rest = others[front:]
    per = max(1, -(-len(fr) // n))
    j = 0
    jr = 0
    for i, m in enumerate(mf):
        m()
        for _ in range(per):
            if j < len(fr):
                fr[j]()
                j += 1
        if j >= len(fr) and jr < len(rest):
            left = n - i
            cnt = -(-(len(rest) - jr) // left)
            for _ in range(cnt):
                if jr < len(rest):
                    rest[jr]()
                    jr += 1
    while j < len(fr):
        fr[j]()
        j += 1
    while jr < len(rest):
        rest[jr]()
        jr += 1


def k_gemm(a, g):
    label = g.label
    a.abl = ABL if not ABL.startswith('A') else ''
    NWG = 256
    TM = 2
    NT = len(g.tiles)
    NBUF = g.nbuf
    XB = 128 * 128
    BUFSZ = XB + g.wbytes
    S_ = g.K // 64
    NPW = g.npw
    P = 2 + NPW
    groups = g.groups
    G = len(groups)
    assert S_ % NBUF == 0 and S_ >= 2 * NBUF
    begin_kernel(a, label, NWG)
    a.salu('s_and_b32', 's3', 's2', 3)
    a.salu('s_lshl_b32', 's3', 's3', 2)
    a.salu('s_bfe_u32', 's4', 's2', '0x20003')
    a.salu('s_add_u32', 's3', 's3', 's4')
    a.salu('s_bfe_u32', 's4', 's2', '0x10002')
    a.salu('s_lshl_b32', 's4', 's4', 3)
    a.salu('s_lshr_b32', 's5', 's2', 5)
    a.salu('s_add_u32', 's4', 's4', 's5')
    SM, SN = 's3', 's4'
    a.valu('v_lshrrev_b32', 'v1', 6, 'v0')
    a.readlane('v_readfirstlane_b32', 's6', 'v1')
    a.valu('v_and_b32', 'v2', 63, 'v0')
    SW = 's6'
    a.salu('s_and_b32', 's7', SW, 3)
    a.salu('s_lshr_b32', 's8', SW, 2)
    SWM, SWN = 's7', 's8'
    a.waitcnt(lgkm=0)
    stamp(a)
    a.salu('s_mul_i32', 's9', SM, 128 * g.lda)
    a.salu('s_add_u32', 's10', 's9', g.x_off)
    a.salu('s_sub_u32', 's11', 2048 * g.lda, 's9')
    srd(a, 40, g.x_ptr, 's10', 's11')
    for i, (ptr, cpn, cc, tot) in enumerate(g.wsrd):
        a.salu('s_mul_i32', 's9', SN, cpn)
        a.salu('s_add_u32', 's9', 's9', cc)
        a.salu('s_sub_u32', 's11', tot, 's9')
        srd(a, 44 + 4 * i, ptr, 's9', 's11')
    L = 'v2'
    a.valu('v_lshrrev_b32', 'v10', 3, L)
    a.valu('v_lshrrev_b32', 'v11', 4, L)
    a.valu('v_bfe_u32', 'v12', L, 2, 2)
    a.valu('v_and_b32', 'v15', 3, L)
    a.salu('s_and_b32', 's9', SW, 1)
    a.salu('s_lshl_b32', 's9', 's9', 2)
    a.valu('v_add_u32', 'v13', 's9', 'v11')
    a.valu('v_and_b32', 'v14', 7, L)
    a.valu('v_xor_b32', 'v13', 'v13', 'v14')
    a.salu('s_lshl_b32', 's9', SW, 3)
    a.valu('v_add_u32', 'v14', 's9', 'v10')
    a.salu('s_mov_b32', 's9', g.lda)
    a.valu('v_mul_lo_u32', 'v14', 'v14', 's9')
    a.valu('v_lshl_add_u32', 'v4', 'v13', 4, 'v14')
    a.valu('v_add_u32', 'v5', 64 * g.lda, 'v4')
    WV = 32
    g.wdma_setup(a, g, WV, SW)
    a.valu('v_and_b32', 'v13', 15, L)
    a.valu('v_lshrrev_b32', 'v14', 1, 'v13')
    a.valu('v_xor_b32', 'v14', 'v14', 'v11')
    a.valu('v_lshlrev_b32', 'v13', 7, 'v13')
    a.valu('v_lshl_add_u32', 'v13', 'v14', 4, 'v13')
    a.salu('s_lshl_b32', 's9', SWM, 12)
    a.valu('v_add_u32', 'v13', 's9', 'v13')
    XR = 16
    for b in range(NBUF):
        a.valu('v_add_u32', V(XR + 2 * b), b * BUFSZ, 'v13')
        a.valu('v_xor_b32', V(XR + 2 * b + 1), 64, V(XR + 2 * b))
    WR = 40
    nsel = g.nsel
    g.wread_setup(a, g, 8, SWN)
    for b in range(NBUF):
        for s_ in range(nsel):
            a.valu('v_add_u32', V(WR + nsel * b + s_), b * BUFSZ + XB, V(24 + s_))
    assert WR + nsel * NBUF <= 64
    a.salu('s_lshl_b32', 's12', SW, 10)
    SWB = 's12'
    SWW = 's75'
    a.salu('s_mov_b32', 's13', 0)
    a.salu('s_mov_b32', 's14', 0)

    FB = 64
    MG = max(len(x) for x in groups)
    SU = getattr(g, 'stage_unit', False)
    if SU:
        SETSZ = 2 * (TM + NT) * 4

        def fxs(par, ks, tm):
            return V(FB + par * SETSZ + ks * (TM + NT) * 4 + tm * 4, 4)

        def fws(par, ks, t, hh=None):
            base = FB + par * SETSZ + ks * (TM + NT) * 4 + TM * 4 + t * 4
            if hh is None:
                return V(base, 4)
            return V(base + 2 * hh, 2)
        NV = FB + 2 * SETSZ
    else:
        NV = FB + 16 + 2 * MG * 4

    def fx(par, tm):
        return V(FB + par * 8 + tm * 4, 4)

    def fw(par, i, hh=None):
        base = FB + 16 + par * MG * 4 + i * 4
        if hh is None:
            return V(base, 4)
        return V(base + 2 * hh, 2)

    def acc(t, tm):
        return A((t * TM + tm) * 4, 4)

    lab_id = [0]

    def guarded(fs, cond):
        def f():
            lab_id[0] += 1
            lb = '%s_g%d' % (label, lab_id[0])
            a.branch('s_cbranch_vccz' if cond == 'dma' else 's_cbranch_vccnz', lb)
            for x in fs:
                x()
            a.label(lb)
        return f

    def dma_list(buf):
        out = []
        for j in range(2):
            def f(j=j):
                a.salu('s_add_u32', 'm0', SWB, buf * BUFSZ + j * 8192)
                a.dma(V(4 + j), S(40, 4), 's13')
            out.append(f)
        for (si, vo, ldsoff) in g.wdma:
            def f(si=si, vo=vo, ldsoff=ldsoff):
                a.salu('s_add_u32', 'm0', SWW, buf * BUFSZ + XB + ldsoff)
                a.dma(V(WV + vo), S(44 + 4 * si, 4), 's14')
            out.append(f)

        def adv():
            a.salu('s_add_u32', 's13', 's13', 128)
            a.salu('s_add_u32', 's14', 's14', 64 * g.ldw)
        out.append(adv)
        return out

    def x_reads(par, buf, ks):
        return [lambda tm=tm: a.ds_read('ds_read_b128', fx(par, tm), V(XR + 2 * buf + ks), tm * 2048) for tm in range(TM)]

    def w_reads(par, buf, ks, gi):
        out = []
        for i, t in enumerate(groups[gi]):
            sel, imm = g.tiles[t]
            for hh in range(2):
                out.append(lambda i=i, sel=sel, imm=imm, hh=hh: a.ds_read(
                    'ds_read_b64_tr_b16', fw(par, i, hh), V(WR + nsel * buf + sel), imm + ks * g.kstep + hh * g.hstep))
        return out

    def mfma_list(xpar, wpar, gi):
        out = []
        for i, t in enumerate(groups[gi]):
            for tm in range(TM):
                if g.swapped[t]:
                    out.append(lambda t=t, tm=tm, i=i: a.mfma('16x16x32', acc(t, tm), fx(xpar, tm), fw(wpar, i), acc(t, tm)))
                else:
                    out.append(lambda t=t, tm=tm, i=i: a.mfma('16x16x32', acc(t, tm), fw(wpar, i), fx(xpar, tm), acc(t, tm)))
        return out

    def su_reads(par, buf):
        out = []
        for ks in range(2):
            for tm in range(TM):
                out.append(lambda tm=tm, ks=ks: a.ds_read('ds_read_b128', fxs(par, ks, tm), V(XR + 2 * buf + ks), tm * 2048))
            for t in range(NT):
                sel, imm = g.tiles[t]
                for hh in range(2):
                    out.append(lambda t=t, sel=sel, imm=imm, hh=hh, ks=ks: a.ds_read(
                        'ds_read_b64_tr_b16', fws(par, ks, t, hh), V(WR + nsel * buf + sel), imm + ks * g.kstep + hh * g.hstep))
        return out

    def su_mfmas(par):
        out = []
        for ks in range(2):
            for t in range(NT):
                for tm in range(TM):
                    if g.swapped[t]:
                        out.append(lambda t=t, tm=tm, ks=ks: a.mfma('16x16x32', acc(t, tm), fxs(par, ks, tm), fws(par, ks, t), acc(t, tm)))
                    else:
                        out.append(lambda t=t, tm=tm, ks=ks: a.mfma('16x16x32', acc(t, tm), fws(par, ks, t), fxs(par, ks, tm), acc(t, tm)))
        return out

    def su_stage(s, abs_s):
        buf = s % NBUF
        nxt = (s + 1) % NBUF
        par = s & 1
        if abs_s is not None and abs_s == S_ - 1:
            a.waitcnt(lgkm=0)
            for m in su_mfmas(par):
                m()
            return
        if abs_s is None:
            vm = P * (NBUF - 2)
        else:
            vm = P * (min(S_ - 1, abs_s + NBUF - 1) - (abs_s + 1)) + extra_vm[0]
        st = abs_s is not None and abs_s < 18
        if st:
            stamp(a)
        a.waitcnt(vm=vm, lgkm=0)
        if st:
            stamp(a)
        a.barrier()
        if st:
            stamp(a)
        reads = su_reads(par ^ 1, nxt)
        d = dma_list(buf) if (abs_s is None or abs_s + NBUF <= S_ - 1) else []
        others = []
        nr, nd = len(reads), len(d)
        j = 0
        for i, r_ in enumerate(reads):
            others.append(r_)
            while j < (i + 1) * nd // nr:
                others.append(d[j])
                j += 1
        others += d[j:]
        interleave(a, su_mfmas(par), others)

    lab_id = [0]
    extra_vm = [0]

    def guarded(fs, lo):
        def f():
            lab_id[0] += 1
            lb = '%s_g%d' % (label, lab_id[0])
            a.branch('s_cbranch_vccz' if lo else 's_cbranch_vccnz', lb)
            for x in fs:
                x()
            a.label(lb)
        return f

    STAG = getattr(g, 'stagger', False)
    if STAG:
        a.salu('s_cmp_lt_u32', SW, 4, nodst=True)
        a.salu('s_cselect_b64', 'vcc', -1, 0)

    NU = 2 * G
    SPREAD = NBUF >= 3 and not SU

    def split_dma(buf):
        d = dma_list(buf)
        if STAG:
            p0 = [guarded([x], True) for x in d[:-1]]
            p1 = [guarded([x], False) for x in d[:-1]] + [d[-1]]
            return [p0, p1] + [[] for _ in range(NU - 2)]
        if not SPREAD:
            return [d] + [[] for _ in range(NU - 1)]
        parts = []
        n = len(d)
        for i in range(NU):
            parts.append(d[i * n // NU:(i + 1) * n // NU])
        return parts

    stamp(a)
    for s in range(NBUF - 1):
        for f in dma_list(s):
            f()
    for f in split_dma(NBUF - 1)[0]:
        f()
    n_first = len([1 for f in split_dma(NBUF - 1)[0]])
    part0_dma = min(n_first, P)
    if STAG:
        part0_dma = 0
    NACC = TM * NT * 4
    for i in range(NACC):
        a.valu('v_accvgpr_write_b32', A(i), 0)
    stamp(a)
    a.waitcnt(vm=P * (NBUF - 2) + part0_dma)
    a.barrier()
    stamp(a)
    if SU:
        for f in su_reads(0, 0):
            f()
    else:
        for f in x_reads(0, 0, 0) + w_reads(0, 0, 0, 0):
            f()

    def stage(s, abs_s):
        if SU:
            return su_stage(s, abs_s)
        buf = s % NBUF
        nxt = (s + 1) % NBUF
        prev = (s - 1) % NBUF
        units = [(ks, gi) for ks in range(2) for gi in range(G)]
        have_pending = abs_s is None or (abs_s - 1 + NBUF <= S_ - 1)
        pend = split_dma(prev) if have_pending else [[] for _ in range(NU)]
        for u, (ks, gi) in enumerate(units):
            wpar = u & 1
            xpar = ks
            lastu = (u == len(units) - 1)
            if lastu and abs_s is not None and abs_s == S_ - 1:
                a.waitcnt(lgkm=0)
                for m in mfma_list(xpar, wpar, gi):
                    m()
                return
            if lastu:
                if abs_s is None:
                    vm = P * (NBUF - 2)
                else:
                    vm = P * (min(S_ - 1, abs_s + NBUF - 1) - (abs_s + 1))
                a.waitcnt(lgkm=0)
                st = abs_s is not None and abs_s < 18
                if st:
                    stamp(a)
                a.waitcnt(vm=vm)
                if st:
                    stamp(a)
                a.barrier()
                if st:
                    stamp(a)
                reads = x_reads(0, nxt, 0) + w_reads(wpar ^ 1, nxt, 0, 0)
                others = list(reads)
                if abs_s is None or abs_s + NBUF <= S_ - 1:
                    others += split_dma(buf)[0]
                interleave(a, mfma_list(xpar, wpar, gi), others, front=len(reads))
            else:
                nks, ngi = units[u + 1]
                reads = []
                if nks != ks:
                    reads += x_reads(nks, buf, nks)
                reads += w_reads(wpar ^ 1, buf, nks, ngi)
                a.waitcnt(lgkm=0)
                interleave(a, mfma_list(xpar, wpar, gi), reads + pend[u + 1], front=len(reads))

    ntail = NBUF
    if STAMP == 'full':
        ntail = S_
    nloop = (S_ - ntail) // NBUF
    if nloop:
        a.salu('s_mov_b32', 's15', nloop)
        a.label(label + '_loop')
        for s in range(NBUF):
            stage(s, None)
        a.salu('s_sub_u32', 's15', 's15', 1)
        a.salu('s_cmp_lg_u32', 's15', 0, nodst=True)
        a.branch('s_cbranch_scc1', label + '_loop')
    stamp(a)
    if hasattr(g.epilogue, 'pre'):
        sv = a.abl
        a.abl = ''
        a.nop(4)
        extra_vm[0] = g.epilogue.pre(a, g, TM, SM, SN, SWM, SWN)
        a.abl = sv
    for s in range(S_ - ntail, S_):
        stage(s, s)
    a.nop(12)
    stamp(a)
    a.abl = ''
    g.epilogue(a, g, acc, TM, SM, SN, SWM, SWN)
    stamp(a)
    a.waitcnt(vm=0)
    stamp(a)
    stamp_dump(a, int(os.environ.get('STAMPWG', '0')))
    end_kernel(a, label)
    ao = max(NV, 128, 148 if hasattr(g.epilogue, 'pre') else 0)
    ao = (ao + 3) // 4 * 4
    assert ao + NACC <= 256, (label, ao, NACC)
    KERNELS.append((label, (NWG, 1, 1), (512, 1, 1), NBUF * BUFSZ, ao + NACC, ao, 96))


def wdma_setup_128(a, g, WV, sw):
    a.valu('v_and_b32', 'v13', 1, 'v11')
    a.salu('s_and_b32', 's9', sw, 1)
    a.salu('s_lshl_b32', 's9', 's9', 1)
    a.valu('v_add_u32', 'v13', 's9', 'v13')
    a.valu('v_bfe_u32', 'v14', 'v2', 1, 2)
    a.valu('v_xor_b32', 'v13', 'v13', 'v14')
    a.valu('v_lshlrev_b32', 'v13', 5, 'v13')
    a.valu('v_and_b32', 'v14', 1, 'v2')
    a.valu('v_lshl_add_u32', 'v13', 'v14', 4, 'v13')
    a.salu('s_lshl_b32', 's9', sw, 3)
    a.valu('v_add_u32', 'v14', 's9', 'v10')
    a.salu('s_mov_b32', 's9', g.ldw)
    a.valu('v_mul_lo_u32', 'v14', 'v14', 's9')
    a.valu('v_add_u32', V(WV), 'v13', 'v14')
    a.salu('s_lshl_b32', 's75', sw, 10)


def wread_setup_128(a, g, _unused, swn):
    a.valu('v_lshrrev_b32', 'v13', 1, 'v12')
    a.valu('v_and_b32', 'v14', 1, 'v11')
    a.valu('v_lshl_add_u32', 'v13', 'v14', 1, 'v13')
    a.salu('s_lshl_b32', 's9', swn, 1)
    a.valu('v_xor_b32', 'v13', 's9', 'v13')
    a.valu('v_lshl_add_u32', 'v14', 'v11', 3, 'v12')
    a.valu('v_lshlrev_b32', 'v14', 7, 'v14')
    a.valu('v_lshl_add_u32', 'v14', 'v15', 3, 'v14')
    a.valu('v_lshl_add_u32', 'v24', 'v13', 5, 'v14')
    a.valu('v_xor_b32', 'v25', 32, 'v24')


def wdma_setup_448(a, g, WV, sw):
    a.salu('s_and_b32', 's76', sw, 3)
    a.salu('s_cmp_lt_u32', sw, 4, nodst=True)
    for i in range(4):
        a.salu('s_cselect_b32', S(44 + i), S(44 + i), S(48 + i))
    a.salu('s_cselect_b32', 's75', 0, 28672)
    a.salu('s_lshl_b32', 's9', 's76', 10)
    a.salu('s_add_u32', 's75', 's75', 's9')
    a.salu('s_mov_b32', 's10', 37450)
    a.salu('s_mov_b32', 's11', g.ldw)
    for j in range(7):
        a.salu('s_lshl_b32', 's9', 's76', 6)
        a.salu('s_add_u32', 's9', 's9', 256 * j)
        a.valu('v_add_u32', 'v13', 's9', 'v2')
        a.valu('v_mul_lo_u32', 'v14', 'v13', 's10')
        a.valu('v_lshrrev_b32', 'v14', 20, 'v14')
        a.valu('v_mul_u32_u24', 'v9', 28, 'v14')
        a.valu('v_sub_u32', 'v13', 'v13', 'v9')
        a.valu('v_bfe_u32', 'v9', 'v14', 3, 1)
        a.valu('v_lshlrev_b32', 'v9', 1, 'v9')
        a.valu('v_xor_b32', 'v13', 'v13', 'v9')
        a.valu('v_mul_lo_u32', 'v14', 'v14', 's11')
        a.valu('v_lshl_add_u32', V(WV + j), 'v13', 4, 'v14')


def wread_setup_448(a, g, _unused, swn):
    a.valu('v_lshl_add_u32', 'v14', 'v11', 3, 'v12')
    a.valu('v_mul_u32_u24', 'v14', 448, 'v14')
    a.valu('v_lshl_add_u32', 'v14', 'v15', 3, 'v14')
    a.salu('s_mul_i32', 's9', swn, 224)
    a.valu('v_add_u32', 'v14', 's9', 'v14')
    a.valu('v_and_b32', 'v13', 1, 'v11')
    a.valu('v_lshlrev_b32', 'v13', 5, 'v13')
    a.valu('v_add_u32', 'v24', 'v14', 'v13')
    a.valu('v_sub_u32', 'v25', 'v14', 'v13')
    a.salu('s_cmp_eq_u32', swn, 0, nodst=True)
    a.branch('s_cbranch_scc1', g.label + '_wrs')
    a.valu('v_mov_b32', 'v13', 'v24')
    a.valu('v_mov_b32', 'v24', 'v25')
    a.valu('v_mov_b32', 'v25', 'v13')
    a.label(g.label + '_wrs')
    a.nop(2)


def make_touch_setup(wrow_lines, wmats):
    def f(a, g, sw):
        nl = 512 + 64 * wrow_lines * len(wmats)
        n = nl // 128
        assert nl % 128 == 0 and 512 % n == 0 and (64 * wrow_lines) % n == 0
        a.salu('s_lshr_b32', 's9', 's2', 3)
        a.salu('s_lshl_b32', 's9', 's9', 2)
        a.salu('s_and_b32', 's10', sw, 3)
        a.salu('s_add_u32', 's9', 's9', 's10')
        a.salu('s_mul_i32', 's9', 's9', n)
        a.valu('v_add_u32', 'v13', 's9', 'v2')
        lab = g.label + '_ts'
        a.salu('s_cmp_lt_u32', 's9', 512, nodst=True)
        a.branch('s_cbranch_scc0', lab + '_w')
        a.salu('s_and_b32', 's10', 's2', 3)
        a.salu('s_mul_i32', 's10', 's10', 512 * g.lda)
        a.salu('s_add_u32', 's11', 's10', g.x_off)
        a.salu('s_sub_u32', 's10', 2048 * g.lda, 's10')
        srd(a, 56, g.x_ptr, 's11', 's10')
        a.salu('s_mov_b32', 's10', g.lda)
        a.valu('v_mul_lo_u32', 'v3', 'v13', 's10')
        a.salu('s_mov_b32', 's74', 128)
        a.branch('s_branch', lab + '_e')
        a.label(lab + '_w')
        a.reset_hist()
        a.salu('s_sub_u32', 's9', 's9', 512)
        a.valu('v_subrev_u32', 'v13', 512, 'v13')
        per = 64 * wrow_lines
        a.salu('s_bfe_u32', 's72', 's2', '0x10002')
        for mi, (ptr, tot, pof, segs) in enumerate(wmats):
            if mi + 1 < len(wmats):
                a.salu('s_cmp_lt_u32', 's9', per, nodst=True)
                a.branch('s_cbranch_scc0', lab + '_w%d' % (mi + 1))
            a.salu('s_mul_i32', 's10', 's72', pof)
            a.salu('s_sub_u32', 's11', tot, 's10')
            srd(a, 56, ptr, 's10', 's11')
            if mi + 1 < len(wmats):
                a.branch('s_branch', lab + '_wd')
                a.label(lab + '_w%d' % (mi + 1))
                a.reset_hist()
                a.salu('s_sub_u32', 's9', 's9', per)
                a.valu('v_subrev_u32', 'v13', per, 'v13')
        a.label(lab + '_wd')
        a.reset_hist()
        a.nop(2)
        if wrow_lines & (wrow_lines - 1) == 0:
            a.valu('v_lshrrev_b32', 'v14', wrow_lines.bit_length() - 1, 'v13')
        else:
            a.salu('s_mov_b32', 's10', {24: 43691, 28: 37450}[wrow_lines])
            a.valu('v_mul_lo_u32', 'v14', 'v13', 's10')
            a.valu('v_lshrrev_b32', 'v14', 20, 'v14')
        a.valu('v_mul_u32_u24', 'v9', wrow_lines, 'v14')
        a.valu('v_sub_u32', 'v13', 'v13', 'v9')
        a.salu('s_mov_b32', 's10', g.ldw)
        a.valu('v_mul_lo_u32', 'v3', 'v14', 's10')
        segs = wmats[0][3]
        if segs > 1:
            a.valu('v_lshrrev_b32', 'v14', 3, 'v13')
            a.valu('v_lshl_add_u32', 'v3', 'v14', 11, 'v3')
            a.valu('v_and_b32', 'v13', 7, 'v13')
        a.valu('v_lshl_add_u32', 'v3', 'v13', 7, 'v3')
        a.salu('s_mov_b32', 's74', 64 * g.ldw)
        a.label(lab + '_e')
        a.reset_hist()
        a.nop(2)
        a.valu('v_cmp_gt_u32', 'vcc', n, 'v2')
        a.valu('v_mov_b32', 'v13', '0x7f000000')
        a.valu('v_cndmask_b32', 'v3', 'v13', 'v3')
        a.salu('s_mov_b32', 's73', 0)
    return f


def ep_lane_consts(a):
    a.valu('v_and_b32', 'v10', 15, 'v2')
    a.valu('v_lshrrev_b32', 'v11', 4, 'v2')
    a.valu('v_and_b32', 'v12', 1, 'v11')
    a.valu('v_lshlrev_b32', 'v12', 5, 'v12')
    a.valu('v_lshrrev_b32', 'v13', 1, 'v11')
    a.valu('v_lshl_add_u32', 'v12', 'v13', 4, 'v12')


def read_acc(a, dst, accr):
    lo = int(accr[2:].split(':')[0])
    for i in range(4):
        a.valu('v_accvgpr_read_b32', V(dst + i), A(lo + i))


def ep_qkv(a, g, acc, TM, SM, SN, SWM, SWN):
    ep_lane_consts(a)
    a.salu('s_lshl_b32', 's9', SN, 1)
    a.salu('s_add_u32', 's9', 's9', SWN)
    a.salu('s_lshl_b32', 's10', SM, 7)
    a.salu('s_lshl_b32', 's11', SWM, 5)
    a.salu('s_add_u32', 's10', 's10', 's11')
    a.salu('s_lshl_b32', 's11', 's9', 17)
    srd(a, 60, P_WS, WS_Q, 4 * MB)
    srd(a, 64, P_WS, WS_K, 4 * MB)
    srd(a, 68, P_WS, WS_VT, 4 * MB)
    a.valu('v_add_u32', 'v14', 's10', 'v10')
    a.valu('v_lshlrev_b32', 'v14', 6, 'v14')
    a.valu('v_add_u32', 'v14', 'v14', 'v12')
    a.valu('v_add_u32', 'v14', 's11', 'v14')
    a.salu('s_mov_b32', 's12', hexf(32 ** -0.5 * 1.4426950408889634))
    T = 32
    for seg in range(2):
        for tm in range(TM):
            b = T + (seg * TM + tm) * 16
            read_acc(a, b, acc(2 * seg, tm))
            read_acc(a, b + 4, acc(2 * seg + 1, tm))
            if seg == 0:
                for i in range(8):
                    a.valu('v_mul_f32', V(b + i), 's12', V(b + i))
            for i in range(4):
                a.valu('v_cvt_pk_bf16_f32', V(b + 8 + i), V(b + 2 * i), V(b + 2 * i + 1))
            a.permlane('v_permlane16_swap_b32', V(b + 8), V(b + 10))
            a.permlane('v_permlane16_swap_b32', V(b + 9), V(b + 11))
            a.buf_store('buffer_store_dwordx4', V(b + 8, 4), 'v14', S(60 + 4 * seg, 4), off=tm * 1024)
    a.salu('s_lshl_b32', 's12', 's10', 6)
    a.salu('s_add_u32', 's12', 's12', 's11')
    a.valu('v_lshrrev_b32', 'v15', 1, 'v11')
    a.valu('v_lshlrev_b32', 'v15', 10, 'v15')
    a.valu('v_lshl_add_u32', 'v15', 'v10', 5, 'v15')
    a.valu('v_and_b32', 'v13', 1, 'v11')
    a.valu('v_lshl_add_u32', 'v15', 'v13', 4, 'v15')
    a.valu('v_add_u32', 'v15', 's12', 'v15')
    for t in range(2):
        b = T + 64 + t * 16
        read_acc(a, b, acc(4 + t, 0))
        read_acc(a, b + 4, acc(4 + t, 1))
        for i in range(4):
            a.valu('v_cvt_pk_bf16_f32', V(b + 8 + i), V(b + 2 * i), V(b + 2 * i + 1))
        a.permlane('v_permlane32_swap_b32', V(b + 8), V(b + 10))
        a.permlane('v_permlane32_swap_b32', V(b + 9), V(b + 11))
        a.buf_store('buffer_store_dwordx4', V(b + 8, 4), 'v15', S(68, 4), off=t * 512)


def make_ep_resid(res_ptr, res_off, gate_idx, dst_ptr, dst_off):
    GV, RV, SO = 128, 136, 144

    def pre(a, g, TM, SM, SN, SWM, SWN):
        ep_lane_consts(a)
        a.salu('s_lshl_b32', 's9', SN, 6)
        a.salu('s_lshl_b32', 's10', SWN, 5)
        a.salu('s_add_u32', 's9', 's9', 's10')
        a.salu('s_lshl_b32', 's10', SM, 7)
        a.salu('s_lshl_b32', 's11', SWM, 5)
        a.salu('s_add_u32', 's10', 's10', 's11')
        srd(a, 60, res_ptr, res_off, 4 * MB)
        srd(a, 64, dst_ptr, dst_off, 4 * MB)
        srd(a, 68, P_WS, WS_MOD, 6144 * 4)
        a.valu('v_add_u32', 'v14', 's10', 'v10')
        a.valu('v_lshlrev_b32', 'v14', 11, 'v14')
        a.salu('s_lshl_b32', 's11', 's9', 1)
        a.valu('v_add_u32', 'v14', 's11', 'v14')
        a.valu('v_lshl_add_u32', 'v15', 'v11', 3, 'v14')
        a.valu('v_add_u32', V(SO), 'v14', 'v12')
        a.salu('s_lshl_b32', 's11', 's9', 2)
        a.salu('s_add_u32', 's11', 's11', gate_idx * 4096)
        a.valu('v_lshlrev_b32', 'v13', 4, 'v11')
        a.buf_load('buffer_load_dwordx4', V(GV, 4), 'v13', S(68, 4), 's11')
        a.buf_load('buffer_load_dwordx4', V(GV + 4, 4), 'v13', S(68, 4), 's11', off=64)
        for tm in range(TM):
            a.salu('s_mov_b32', 's9', tm * 32768)
            for t in range(2):
                a.buf_load('buffer_load_dwordx2', V(RV + tm * 4 + t * 2, 2), 'v15', S(60, 4), 's9', off=t * 32)
        return 2 + 2 * TM

    def ep(a, g, acc, TM, SM, SN, SWM, SWN):
        T = 64
        a.waitcnt(vm=0)
        for tm in range(TM):
            b = T + tm * 24
            read_acc(a, b, acc(0, tm))
            read_acc(a, b + 4, acc(1, tm))
            for i in range(8):
                bf16_round(a, V(b + i), V(b + i))
                a.valu('v_mul_f32', V(b + i), V(b + i), V(GV + i))
                bf16_round(a, V(b + i), V(b + i))
            for i in range(4):
                r = V(RV + tm * 4 + i)
                a.valu('v_lshlrev_b32', V(b + 12 + 2 * i), 16, r)
                a.valu('v_and_b32', V(b + 13 + 2 * i), '0xffff0000', r)
            for i in range(8):
                a.valu('v_add_f32', V(b + i), V(b + i), V(b + 12 + i))
            for i in range(4):
                a.valu('v_cvt_pk_bf16_f32', V(b + 8 + i), V(b + 2 * i), V(b + 2 * i + 1))
            a.permlane('v_permlane16_swap_b32', V(b + 8), V(b + 10))
            a.permlane('v_permlane16_swap_b32', V(b + 9), V(b + 11))
            a.salu('s_mov_b32', 's12', tm * 32768)
            a.buf_store('buffer_store_dwordx4', V(b + 8, 4), V(SO), S(64, 4), 's12')
    ep.pre = pre
    return ep


def ep_gateup(a, g, acc, TM, SM, SN, SWM, SWN):
    ep_lane_consts(a)
    a.salu('s_mul_i32', 's9', SN, 224)
    a.salu('s_mul_i32', 's10', SWN, 112)
    a.salu('s_add_u32', 's9', 's9', 's10')
    a.salu('s_lshl_b32', 's10', SM, 7)
    a.salu('s_lshl_b32', 's11', SWM, 5)
    a.salu('s_add_u32', 's10', 's10', 's11')
    srd(a, 60, P_WS, WS_HH, 2048 * 7168)
    a.valu('v_add_u32', 'v14', 's10', 'v10')
    a.salu('s_mov_b32', 's11', 7168)
    a.valu('v_mul_lo_u32', 'v14', 'v14', 's11')
    a.salu('s_lshl_b32', 's11', 's9', 1)
    a.valu('v_add_u32', 'v14', 's11', 'v14')
    a.valu('v_lshl_add_u32', 'v15', 'v11', 3, 'v14')
    a.valu('v_add_u32', 'v16', 'v14', 'v12')
    T = 32
    n = 0
    for tm in range(TM):
        a.salu('s_mov_b32', 's12', tm * 16 * 7168)
        for pr in range(4):
            b = T + (n % 4) * 24
            n += 1
            nt = 2 if pr < 3 else 1
            for q in range(nt):
                t = 2 * pr + q
                read_acc(a, b + 4 * q, acc(t, tm))
                read_acc(a, b + 12 + 4 * q, acc(7 + t, tm))
            for i in range(4 * nt):
                bf16_round(a, V(b + i), V(b + i))
                bf16_round(a, V(b + 12 + i), V(b + 12 + i))
                a.valu('v_mul_f32', V(b + i), V(b + i), V(b + 12 + i))
            for i in range(2 * nt):
                a.valu('v_cvt_pk_bf16_f32', V(b + 8 + i), V(b + 2 * i), V(b + 2 * i + 1))
            if nt == 2:
                a.permlane('v_permlane16_swap_b32', V(b + 8), V(b + 10))
                a.permlane('v_permlane16_swap_b32', V(b + 9), V(b + 11))
                a.buf_store('buffer_store_dwordx4', V(b + 8, 4), 'v16', S(60, 4), 's12', off=pr * 64)
            else:
                a.buf_store('buffer_store_dwordx2', V(b + 8, 2), 'v15', S(60, 4), 's12', off=pr * 64)


PFD = int(os.environ.get('PFD', '4'))


def gemm_qkv():
    g = Gemm()
    g.label = 'qkv_kernel'
    g.K = 1024
    g.lda = 2048
    g.ldw = 6144
    g.x_ptr, g.x_off = P_WS, WS_H1
    g.nbuf = 4
    g.wbytes = 3 * 8192
    tot = 1024 * 6144
    g.wsrd = [(P_WQKV, 128, seg * 2048, tot) for seg in range(3)]
    g.npw = 3
    g.wdma = [(seg, 0, seg * 8192) for seg in range(3)]
    g.tiles = [(t, seg * 8192) for seg in range(3) for t in range(2)]
    g.groups = [[0, 1, 2], [3, 4, 5]]
    g.kstep, g.hstep, g.nsel = 4096, 512, 2
    g.swapped = [False, False, False, False, True, True]
    g.wdma_setup, g.wread_setup = wdma_setup_128, wread_setup_128
    g.touch_setup = make_touch_setup(24, [(P_WQKV, tot, 1024, 3)])
    g.pfd = PFD + 2
    g.epilogue = ep_qkv
    g.stage_unit = True
    return g


def gemm_small(label, K, x_off, wptr, ep):
    g = Gemm()
    g.label = label
    g.K = K
    g.lda = 2 * K
    g.ldw = 2048
    g.x_ptr, g.x_off = P_WS, x_off
    g.nbuf = 4
    g.wbytes = 8192
    g.wsrd = [(wptr, 128, 0, K * 2048)]
    g.npw = 1
    g.wdma = [(0, 0, 0)]
    g.tiles = [(0, 0), (1, 0)]
    g.groups = [[0, 1]]
    g.kstep, g.hstep, g.nsel = 4096, 512, 2
    g.swapped = [False, False]
    g.wdma_setup, g.wread_setup = wdma_setup_128, wread_setup_128
    g.touch_setup = make_touch_setup(8, [(wptr, K * 2048, 1024, 1)])
    g.pfd = PFD + 4
    g.epilogue = ep
    g.stage_unit = True
    return g


def gemm_wo():
    return gemm_small('wo_kernel', 1024, WS_O, P_WO, make_ep_resid(P_X, 0, 2, P_WS, WS_X1))


def gemm_down():
    return gemm_small('down_kernel', 3584, WS_HH, P_WD, make_ep_resid(P_WS, WS_X1, 5, P_OUT, 0))


def gemm_gateup():
    g = Gemm()
    g.label = 'gateup_kernel'
    g.K = 1024
    g.lda = 2048
    g.ldw = 7168
    g.x_ptr, g.x_off = P_WS, WS_H2
    g.nbuf = 2
    g.wbytes = 2 * 28672
    tot = 1024 * 7168
    g.wsrd = [(P_WG, 448, 0, tot), (P_WU, 448, 0, tot)]
    g.npw = 7
    g.wdma = [(0, j, j * 4096) for j in range(7)]
    g.tiles = [(tt & 1, m * 28672 + tt * 32) for m in range(2) for tt in range(7)]
    g.groups = [list(range(7)), list(range(7, 14))]
    g.kstep, g.hstep, g.nsel = 32 * 448, 4 * 448, 2
    g.swapped = [False] * 14
    g.wdma_setup, g.wread_setup = wdma_setup_448, wread_setup_448
    g.touch_setup = make_touch_setup(28, [(P_WG, tot, 3584, 1), (P_WU, tot, 3584, 1)])
    g.pfd = PFD
    g.epilogue = ep_gateup
    g.stagger = 'nostag' not in ABL
    return g


def k_attn(a):
    label = 'attn_kernel'
    NWG = 256
    begin_kernel(a, label, NWG)
    a.salu('s_and_b32', 's3', 's2', 7)
    a.salu('s_lshl_b32', 's3', 's3', 2)
    a.salu('s_bfe_u32', 's4', 's2', '0x20003')
    a.salu('s_add_u32', 's3', 's3', 's4')
    a.salu('s_lshr_b32', 's4', 's2', 5)
    a.valu('v_lshrrev_b32', 'v1', 6, 'v0')
    a.readlane('v_readfirstlane_b32', 's6', 'v1')
    a.valu('v_and_b32', 'v2', 63, 'v0')
    a.valu('v_and_b32', 'v3', 31, 'v2')
    a.valu('v_lshrrev_b32', 'v4', 5, 'v2')
    a.waitcnt(lgkm=0)
    stamp(a, 'v217')
    a.salu('s_lshl_b32', 's7', 's3', 17)
    a.salu('s_add_u32', 's8', 's7', WS_Q)
    srd(a, 40, P_WS, 's8', 131072)
    a.salu('s_add_u32', 's8', 's7', WS_K)
    srd(a, 44, P_WS, 's8', 131072)
    a.salu('s_add_u32', 's8', 's7', WS_VT)
    srd(a, 48, P_WS, 's8', 131072)
    srd(a, 52, P_WS, WS_O, 4 * MB)
    a.salu('s_lshl_b32', 's8', 's4', 8)
    a.salu('s_lshl_b32', 's9', 's6', 5)
    a.salu('s_add_u32', 's8', 's8', 's9')
    a.valu('v_add_u32', 'v5', 's8', 'v3')
    a.valu('v_lshlrev_b32', 'v6', 6, 'v5')
    a.valu('v_lshl_add_u32', 'v6', 'v4', 4, 'v6')
    QF = 16
    a.buf_load('buffer_load_dwordx4', V(QF, 4), 'v6', S(40, 4))
    a.buf_load('buffer_load_dwordx4', V(QF + 4, 4), 'v6', S(40, 4), off=32)
    a.valu('v_lshrrev_b32', 'v7', 4, 'v2')
    a.valu('v_and_b32', 'v8', 3, 'v2')
    a.valu('v_xor_b32', 'v7', 'v7', 'v8')
    a.valu('v_lshrrev_b32', 'v8', 2, 'v2')
    a.valu('v_lshlrev_b32', 'v8', 6, 'v8')
    a.valu('v_lshl_add_u32', 'v8', 'v7', 4, 'v8')
    a.salu('s_lshl_b32', 's9', 's6', 10)
    a.valu('v_add_u32', 'v8', 's9', 'v8')
    a.valu('v_add_u32', 'v9', 8192, 'v8')
    a.valu('v_lshrrev_b32', 'v10', 4, 'v2')
    a.valu('v_xor_b32', 'v10', 'v10', 'v2')
    a.valu('v_and_b32', 'v10', 1, 'v10')
    a.valu('v_lshrrev_b32', 'v11', 1, 'v2')
    a.valu('v_lshlrev_b32', 'v11', 5, 'v11')
    a.valu('v_lshl_add_u32', 'v10', 'v10', 4, 'v11')
    a.valu('v_add_u32', 'v10', 's9', 'v10')
    a.valu('v_add_u32', 'v11', 8192, 'v10')
    a.valu('v_bfe_u32', 'v12', 'v3', 2, 2)
    a.valu('v_xor_b32', 'v12', 'v12', 'v4')
    a.valu('v_lshlrev_b32', 'v13', 6, 'v3')
    a.valu('v_lshl_add_u32', 'v12', 'v12', 4, 'v13')
    a.valu('v_xor_b32', 'v13', 32, 'v12')
    a.valu('v_bfe_u32', 'v14', 'v3', 3, 1)
    a.valu('v_xor_b32', 'v14', 'v14', 'v4')
    a.valu('v_lshlrev_b32', 'v15', 5, 'v3')
    a.valu('v_lshl_add_u32', 'v14', 'v14', 4, 'v15')
    a.valu('v_add_u32', 'v14', 16384, 'v14')
    KR0, KR1, VR = 'v12', 'v13', 'v14'
    a.valu('v_add_u32', 'v197', 65536, 'v12')
    a.valu('v_add_u32', 'v198', 65536, 'v13')
    a.valu('v_add_u32', 'v199', 65536, 'v14')
    SKOFF = 's10'
    a.salu('s_mov_b32', SKOFF, 0)
    STHR, SFLOOR = 's11', 's12'
    a.salu('s_mov_b32', STHR, '0xff800000')
    a.salu('s_mov_b32', SFLOOR, '0xff800000')

    def dma_stage(buf):
        out = []
        for i, vo in enumerate(('v8', 'v9')):
            def f(i=i, vo=vo):
                a.salu('s_add_u32', 'm0', 's9', buf * 32768 + i * 8192)
                a.dma(vo, S(44, 4), SKOFF)
            out.append(f)
        for i, vo in enumerate(('v10', 'v11')):
            def f(i=i, vo=vo):
                a.salu('s_add_u32', 'm0', 's9', buf * 32768 + 16384 + i * 8192)
                a.dma(vo, S(48, 4), SKOFF)
            out.append(f)
        out.append(lambda: a.salu('s_add_u32', SKOFF, SKOFF, 16384))
        return out

    KF = 24
    VF = 40
    ONE = 56
    PB = 60
    OA = 76
    LA = 92
    CM = 108
    SS = 124
    TMP = 188
    PB2 = 200
    FV = 216
    SFLAG = 's14'
    a.salu('s_mov_b32', SFLAG, 0)
    for i in range(4):
        a.valu('v_mov_b32', V(ONE + i), '0x3f803f80')
    for i in range(16):
        a.valu('v_mov_b32', V(OA + i), 0)
        a.valu('v_mov_b32', V(LA + i), 0)
        a.valu('v_mov_b32', V(CM + i), 0)

    def k_reads(buf, it):
        out = []
        for kt in range(2):
            for st in range(2):
                out.append(lambda kt=kt, st=st: a.ds_read('ds_read_b128', V(KF + kt * 8 + st * 4, 4),
                                                          ((KR0, KR1), (KR0, KR1), ('v197', 'v198'))[buf][st],
                                                          (buf % 2) * 32768 + (it * 2 + kt) * 2048))
        return out

    def v_reads(buf, it):
        return [lambda u=u: a.ds_read('ds_read_b128', V(VF + u * 4, 4), (VR, VR, 'v199')[buf], (buf % 2) * 32768 + (it * 4 + u) * 1024)
                for u in range(4)]

    def s_mfmas(ss):
        out = []
        for kt in range(2):
            d = V(SS + ss * 32 + kt * 16, 16)
            out.append(lambda kt=kt, d=d: a.mfma('32x32x16', d, V(KF + kt * 8, 4), V(QF, 4), V(CM, 16)))
            out.append(lambda kt=kt, d=d: a.mfma('32x32x16', d, V(KF + kt * 8 + 4, 4), V(QF + 4, 4), d))
        return out

    a.salu('s_lshl_b32', 's78', 's2', 3)
    a.salu('s_add_u32', 's78', 's78', 's6')
    for mi, (ptr, nbytes, n) in enumerate([(P_WO, 1024 * 2048, 8), (P_WG, 1024 * 7168, 28), (P_WU, 1024 * 7168, 28), (P_WD, 3584 * 2048, 28)]):
        srd(a, 56 + 4 * mi, ptr, 0, nbytes)
        a.salu('s_mul_i32', 's77', 's78', n * 128)
        a.valu('v_lshlrev_b32', V(TMP + 4 + mi), 7, 'v2')
        a.valu('v_add_u32', V(TMP + 4 + mi), 's77', V(TMP + 4 + mi))
        a.valu('v_cmp_gt_u32', 'vcc', n, 'v2')
        a.valu('v_mov_b32', V(TMP + 8), '0x7f000000')
        a.valu('v_cndmask_b32', V(TMP + 4 + mi), V(TMP + 8), V(TMP + 4 + mi))
    for f in dma_stage(0):
        f()
    for f in dma_stage(1):
        f()
    a.waitcnt(vm=4)
    a.barrier()
    for f in k_reads(0, 0):
        f()
    a.waitcnt(lgkm=0)
    for f in s_mfmas(0):
        f()
    for f in k_reads(0, 1):
        f()
    for f in v_reads(0, 0):
        f()

    rare_id = [0]

    def pv_mfmas(pb):
        pv = []
        for u in range(4):
            pv.append(lambda u=u: a.mfma('32x32x16', V(OA, 16), V(VF + u * 4, 4), V(pb + u * 4, 4), V(OA, 16)))
            pv.append(lambda u=u: a.mfma('32x32x16', V(LA, 16), V(ONE, 4), V(pb + u * 4, 4), V(LA, 16)))
        return pv

    def pos(st, it, d):
        j = it + d
        return ((st + j // 4) % 3, j % 4)

    def iteration(st, it, ss, gidx, first=False):
        sb = SS + ss * 32
        pb_cur = (PB, PB2)[ss]
        pb_prev = (PB, PB2)[ss ^ 1]
        NIT = 32
        last = gidx is not None and gidx == NIT - 1
        has_next = not last
        has_next2 = gidx is None or gidx + 2 <= NIT - 1
        if it == 2 and (gidx is None or gidx + 2 <= NIT - 1):
            a.waitcnt(vm=0)
            a.barrier()
            if gidx is None or gidx // 4 + 2 <= 7:
                for f in dma_stage((st + 2) % 3):
                    f()
                if 'notouch' not in os.environ.get('ABL', '') and gidx is None:
                    lb = 'attn_nt%d' % st
                    a.salu('s_cmp_lg_u32', 's13', 2, nodst=True)
                    a.branch('s_cbranch_scc1', lb)
                    a.buf_load('buffer_load_dword', V(TMP + 8), V(TMP + 4 + st), S(56 + 4 * st, 4))
                    if st == 2:
                        a.buf_load('buffer_load_dword', V(TMP + 8), V(TMP + 4 + 3), S(56 + 12, 4))
                    a.label(lb)
        mx = []
        mx.append(lambda: a.valu('v_max3_f32', V(TMP), V(sb), V(sb + 1), V(sb + 2)))
        mx.append(lambda: a.valu('v_max3_f32', V(TMP + 1), V(sb + 3), V(sb + 4), V(sb + 5)))
        k = 6
        while k < 32:
            mx.append(lambda k=k: a.valu('v_max3_f32', V(TMP), V(TMP), V(sb + k), V(sb + k + 1)))
            if k + 3 < 32:
                mx.append(lambda k=k: a.valu('v_max3_f32', V(TMP + 1), V(TMP + 1), V(sb + k + 2), V(sb + k + 3)))
            k += 4
        mx.append(lambda: a.valu('v_max_f32', V(TMP), V(TMP), V(TMP + 1)))
        mx.append(lambda: a.valu('v_cmp_lt_f32', 'vcc', STHR, V(TMP)))
        pv = [] if first else pv_mfmas(pb_prev)
        if first:
            for f in mx:
                f()
        else:
            a.waitcnt(lgkm=4)
            interleave(a, pv[:3], mx)
        rid = rare_id[0]
        rare_id[0] += 1
        a.branch('s_cbranch_vccnz', 'attn_rare%d' % rid)
        a.label('attn_back%d' % rid)
        rare_blocks.append((rid, sb))
        ex = []
        for i in range(32):
            ex.append(lambda i=i: a.valu('v_exp_f32', V(sb + i), V(sb + i)))
            if i % 2 == 1:
                ex.append(lambda i=i: a.valu('v_cvt_pk_bf16_f32', V(pb_cur + i // 2), V(sb + i - 1), V(sb + i)))
        mf = pv[3:]
        nrest = len(mf)
        if has_next:
            a.waitcnt(lgkm=0)
            mf = mf + s_mfmas(ss ^ 1)
        b0, i0 = pos(st, it, 0)
        vr = [] if first else v_reads(b0, i0)
        kr = []
        if has_next and has_next2:
            b2, i2 = pos(st, it, 2)
            kr = k_reads(b2, i2)
        n = len(mf)
        j = 0
        for i, m in enumerate(mf):
            m()
            if i == nrest - 1:
                for f in vr:
                    f()
            tgt = (i + 1) * len(ex) // n
            while j < tgt:
                ex[j]()
                j += 1
        while j < len(ex):
            ex[j]()
            j += 1
        for f in kr:
            f()
        if not first:
            a.salu('s_cmp_eq_u32', SFLAG, 0, nodst=True)
            a.branch('s_cbranch_scc0', 'attn_fix%d' % rid)
            a.label('attn_fixb%d' % rid)
            fix_blocks.append(rid)
        else:
            a.salu('s_mov_b32', SFLAG, 0)
        if last:
            a.waitcnt(lgkm=0)
            for f in pv_mfmas(pb_cur):
                f()

    fix_blocks = []
    rare_blocks = []
    a.abl = ABL if ABL.startswith('A') else ''
    stamp(a, 'v217')
    iteration(0, 0, 0, 0, first=True)
    stamp(a, 'v217')
    a.salu('s_mov_b32', 's13', 2)
    a.label('attn_loop')
    a.loop_guard()
    for j in range(1, 13):
        iteration((j // 4) % 3, j % 4, j & 1, None)
    a.salu('s_sub_u32', 's13', 's13', 1)
    a.salu('s_cmp_lg_u32', 's13', 0, nodst=True)
    a.branch('s_cbranch_scc1', 'attn_loop')
    a.loop_guard()
    for j in range(25, 32):
        stamp(a, 'v217')
        iteration((j // 4) % 3, j % 4, j & 1, j)
    stamp(a, 'v217')
    a.abl = ''
    a.nop(16)
    a.valu('v_rcp_f32', V(TMP), V(LA))
    for i in range(16):
        a.valu('v_mul_f32', V(OA + i), V(OA + i), V(TMP))
    for i in range(8):
        a.valu('v_cvt_pk_bf16_f32', V(PB + i), V(OA + 2 * i), V(OA + 2 * i + 1))
    a.valu('v_lshlrev_b32', 'v6', 11, 'v5')
    a.salu('s_lshl_b32', 's8', 's3', 6)
    a.valu('v_add_u32', 'v6', 's8', 'v6')
    a.valu('v_lshl_add_u32', 'v6', 'v4', 4, 'v6')
    for pr in range(2):
        b = PB + 4 * pr
        a.permlane('v_permlane32_swap_b32', V(b), V(b + 2))
        a.permlane('v_permlane32_swap_b32', V(b + 1), V(b + 3))
        a.buf_store('buffer_store_dwordx4', V(b, 4), 'v6', S(52, 4), off=pr * 32)
    stamp(a, 'v217')
    a.waitcnt(vm=0)
    stamp(a, 'v217')
    stamp_dump(a, 0, 'v217')
    a.other('s_endpgm')
    for rid, sb in rare_blocks:
        a.label('attn_rare%d' % rid)
        a.reset_hist()
        a.nop(16)
        a.valu('v_mov_b32', V(TMP + 1), V(TMP))
        a.valu('v_mov_b32', V(TMP + 2), V(TMP))
        a.permlane('v_permlane32_swap_b32', V(TMP + 1), V(TMP + 2))
        a.valu('v_max_f32', V(TMP), V(TMP + 1), V(TMP + 2))
        a.valu('v_max_f32', V(TMP), SFLOOR, V(TMP))
        a.valu('v_sub_f32', V(TMP + 1), 0, V(TMP))
        a.valu('v_exp_f32', V(FV), V(TMP + 1))
        for i in range(16):
            a.valu('v_sub_f32', V(CM + i), V(CM + i), V(TMP))
        for i in range(32):
            a.valu('v_sub_f32', V(sb + i), V(sb + i), V(TMP))
        a.salu('s_mov_b32', SFLAG, 1)
        a.salu('s_mov_b32', STHR, hexf(48.0))
        a.salu('s_mov_b32', SFLOOR, 0)
        a.nop(4)
        a.branch('s_branch', 'attn_back%d' % rid)
    for rid in fix_blocks:
        a.label('attn_fix%d' % rid)
        a.reset_hist()
        a.nop(16)
        for i in range(16):
            a.valu('v_mul_f32', V(OA + i), V(OA + i), V(FV))
            a.valu('v_mul_f32', V(LA + i), V(LA + i), V(FV))
        a.salu('s_mov_b32', SFLAG, 0)
        a.nop(4)
        a.branch('s_branch', 'attn_fixb%d' % rid)
    end_kernel(a, label)
    KERNELS.append((label, (NWG, 1, 1), (512, 1, 1), 98304, 220, 220, 96))


def build(only=None):
    a = Asm()
    k_mod(a)
    k_ln(a, 'ln1_kernel', P_X, 0, WS_H1, 0, 1, touch=[(P_WQKV, 1024 * 6144, 24)])
    k_gemm(a, gemm_qkv())
    k_attn(a)
    k_gemm(a, gemm_wo())
    k_ln(a, 'ln2_kernel', P_WS, WS_X1, WS_H2, 3, 4)
    k_gemm(a, gemm_gateup())
    k_gemm(a, gemm_down())
    hdr = []
    ref = open('cdna_kernels/%s.s.ref' % NAME).read().splitlines()
    for ln in ref:
        if ln.startswith(';') and '@launch' not in ln and 'launch geometry' not in ln and 'grid=ceil' not in ln:
            hdr.append(ln)
    for (label, grid, block, lds, nv, ao, ns) in KERNELS:
        if only is not None and label not in only:
            continue
        hdr.append('; @launch kernel=%s grid=(%d,%d,%d) block=(%d,%d,%d) lds=%d' % ((label,) + grid + block + (lds,)))
    out = '\n'.join(hdr) + '\n'
    out += '.amdgcn_target "amdgcn-amd-amdhsa--gfx950"\n.text\n'
    out += a.text()
    out += '.section .rodata,"a"\n'
    for (label, grid, block, lds, nv, ao, ns) in KERNELS:
        out += '.p2align 6\n.amdhsa_kernel %s\n' % label
        out += '  .amdhsa_next_free_vgpr %d\n' % nv
        out += '  .amdhsa_next_free_sgpr %d\n' % ns
        out += '  .amdhsa_accum_offset %d\n' % ao
        out += '  .amdhsa_group_segment_fixed_size 0\n'
        out += '  .amdhsa_kernarg_size 96\n'
        out += '  .amdhsa_user_sgpr_count 2\n'
        out += '  .amdhsa_user_sgpr_kernarg_segment_ptr 1\n'
        out += '  .amdhsa_system_sgpr_workgroup_id_x 1\n'
        out += '  .amdhsa_float_denorm_mode_32 3\n'
        out += '  .amdhsa_float_denorm_mode_16_64 3\n'
        out += '.end_amdhsa_kernel\n'
    return out


if __name__ == '__main__':
    dst = sys.argv[1] if len(sys.argv) > 1 else 'cdna_kernels/%s.s' % NAME
    open(dst, 'w').write(build())
    print('wrote', dst)
```

```python
import math
import struct
import sys
import os

sys.path.insert(0, os.path.dirname(os.path.abspath(__file__)))
from asmlib import Asm, V, A, S

NAME = 'adaLN_cond__mha_block__glu_gated_bilinear__prompt'

MB = 1 << 20
WS_MOD = 0
WS_H1 = 1 * MB
WS_Q = 8 * MB
WS_K = 12 * MB
WS_VT = 16 * MB
WS_O = 20 * MB
WS_X1 = 24 * MB
WS_H2 = 28 * MB
WS_HH = 32 * MB

P_X, P_WQKV, P_WO, P_BX, P_WG, P_WU, P_WD, P_C, P_WMOD, P_OUT, P_DBG, P_WS = [16 + 2 * i for i in range(12)]


def f32bits(x):
    return struct.unpack('<I', struct.pack('<f', x))[0]


def hexf(x):
    return '0x%08x' % f32bits(x)


KERNELS = []


def begin_kernel(a, label, nwg):
    a.raw('.p2align 8')
    a.raw('.globl %s' % label)
    a.raw('.type %s,@function' % label)
    a.raw(label + ':')
    a.reset_hist()
    a.salu('s_cmp_ge_u32', 's2', nwg, nodst=True)
    a.branch('s_cbranch_scc1', label + '_end')
    a.smem('s_load_dwordx16', S(16, 16), S(0, 2), 0)
    a.smem('s_load_dwordx8', S(32, 8), S(0, 2), 64)


def end_kernel(a, label):
    a.label(label + '_end')
    a.other('s_endpgm')


def srd(a, d, ptr, off, nbytes):
    a.salu('s_add_u32', S(d), S(ptr), off)
    a.salu('s_addc_u32', S(d + 1), S(ptr + 1), 0)
    a.salu('s_and_b32', S(d + 1), S(d + 1), '0xffff')
    a.salu('s_mov_b32', S(d + 2), nbytes)
    a.salu('s_mov_b32', S(d + 3), '0x00020000')


def bf16_round(a, dst, src):
    a.valu('v_cvt_pk_bf16_f32', dst, src, src)
    a.valu('v_and_b32', dst, '0xffff0000', dst)


def touch_weights(a, gw_vreg, lane_vreg, mats, srd0, tmp0):
    for i, (ptr, nbytes, n) in enumerate(mats):
        d = srd0 + 4 * i
        srd(a, d, ptr, 0, nbytes)
        a.salu('s_mul_i32', 's77', gw_vreg, n * 128)
        a.valu('v_lshlrev_b32', V(tmp0), 7, lane_vreg)
        a.valu('v_add_u32', V(tmp0), 's77', V(tmp0))
        a.valu('v_cmp_gt_u32', 'vcc', n, lane_vreg)
        a.valu('v_mov_b32', V(tmp0 + 1), '0x7f000000')
        a.valu('v_cndmask_b32', V(tmp0), V(tmp0 + 1), V(tmp0))
        a.buf_load('buffer_load_dword', V(tmp0 + 2), V(tmp0), S(d, 4))


def k_mod(a):
    label = 'mod_kernel'
    NWG = 192
    begin_kernel(a, label, NWG)
    a.salu('s_and_b32', 's3', 's2', 7)
    a.salu('s_mul_i32', 's3', 's3', 24)
    a.salu('s_lshr_b32', 's4', 's2', 3)
    a.salu('s_add_u32', 's3', 's3', 's4')
    a.waitcnt(lgkm=0)
    srd(a, 40, P_C, 0, 2048)
    srd(a, 44, P_WMOD, 0, 1024 * 12288)
    srd(a, 48, P_WS, WS_MOD, 6144 * 4)
    a.valu('v_lshlrev_b32', 'v1', 3, 'v0')
    a.buf_load('buffer_load_dwordx2', V(2, 2), 'v1', S(40, 4))
    a.valu('v_lshrrev_b32', 'v4', 2, 'v0')
    a.valu('v_and_b32', 'v5', 3, 'v0')
    a.salu('s_mov_b32', 's5', 12288)
    a.valu('v_mul_lo_u32', 'v6', 'v4', 's5')
    a.valu('v_lshlrev_b32', 'v7', 4, 'v5')
    a.valu('v_add_u32', 'v6', 'v6', 'v7')
    a.salu('s_lshl_b32', 's6', 's3', 6)
    for p in range(16):
        a.salu('s_add_u32', 's7', 's6', p * 64 * 12288)
        a.buf_load('buffer_load_dwordx4', V(64 + 4 * p, 4), 'v6', S(44, 4), 's7')
    a.waitcnt(vm=16)
    a.valu('v_lshlrev_b32', 'v8', 16, 'v2')
    a.valu('v_and_b32', 'v9', '0xffff0000', 'v2')
    a.valu('v_lshlrev_b32', 'v10', 16, 'v3')
    a.valu('v_and_b32', 'v11', '0xffff0000', 'v3')
    a.salu('s_mov_b32', 's8', hexf(-1.4426950408889634))
    for i in range(4):
        a.valu('v_mul_f32', V(12 + i), 's8', V(8 + i))
    for i in range(4):
        a.valu('v_exp_f32', V(12 + i), V(12 + i))
    for i in range(4):
        a.valu('v_add_f32', V(12 + i), '1.0', V(12 + i))
    for i in range(4):
        a.valu('v_rcp_f32', V(12 + i), V(12 + i))
    for i in range(4):
        a.valu('v_mul_f32', V(12 + i), V(8 + i), V(12 + i))
    for i in range(4):
        bf16_round(a, V(12 + i), V(12 + i))
    a.valu('v_lshlrev_b32', 'v16', 4, 'v0')
    a.ds_write('ds_write_b128', 'v16', V(12, 4))
    a.waitcnt(lgkm=0)
    a.barrier()
    a.valu('v_lshlrev_b32', 'v17', 2, 'v4')
    for p in range(16):
        a.ds_read('ds_read_b32', V(24 + p), 'v17', p * 256)
    for j in range(8):
        a.valu('v_mov_b32', V(40 + j), 0)
    a.waitcnt(vm=0, lgkm=0)
    for p in range(16):
        for d in range(4):
            src = V(64 + 4 * p + d)
            a.valu('v_lshlrev_b32', 'v48', 16, src)
            a.valu('v_and_b32', 'v49', '0xffff0000', src)
            a.valu('v_fmac_f32', V(40 + 2 * d), V(24 + p), 'v48')
            a.valu('v_fmac_f32', V(41 + 2 * d), V(24 + p), 'v49')
    a.valu('v_lshlrev_b32', 'v18', 5, 'v0')
    a.ds_write('ds_write_b128', 'v18', V(40, 4), 4096)
    a.ds_write('ds_write_b128', 'v18', V(44, 4), 4096 + 16)
    a.waitcnt(lgkm=0)
    a.barrier()
    a.valu('v_and_b32', 'v19', 31, 'v0')
    a.valu('v_lshrrev_b32', 'v20', 5, 'v0')
    a.valu('v_lshlrev_b32', 'v21', 10, 'v20')
    a.valu('v_lshl_add_u32', 'v21', 'v19', 2, 'v21')
    for i in range(8):
        a.ds_read('ds_read_b32', V(24 + i), 'v21', 4096 + i * 128)
    a.waitcnt(lgkm=0)
    for i in range(1, 8):
        a.valu('v_add_f32', 'v24', 'v24', V(24 + i))
    a.valu('v_lshlrev_b32', 'v22', 2, 'v0')
    a.ds_write('ds_write_b32', 'v22', 'v24', 12288)
    a.waitcnt(lgkm=0)
    a.barrier()
    a.valu('v_lshlrev_b32', 'v22', 2, 'v19')
    for i in range(8):
        a.ds_read('ds_read_b32', V(24 + i), 'v22', 12288 + i * 128)
    a.waitcnt(lgkm=0)
    for i in range(1, 8):
        a.valu('v_add_f32', 'v24', 'v24', V(24 + i))
    bf16_round(a, 'v24', 'v24')
    a.salu('s_lshr_b32', 's9', 's3', 5)
    a.salu('s_cmp_eq_u32', 's9', 1, nodst=True)
    a.branch('s_cbranch_scc1', 'mod_plus1')
    a.salu('s_cmp_eq_u32', 's9', 4, nodst=True)
    a.branch('s_cbranch_scc0', 'mod_store')
    a.label('mod_plus1')
    a.nop(2)
    a.valu('v_add_f32', 'v24', '1.0', 'v24')
    bf16_round(a, 'v24', 'v24')
    a.label('mod_store')
    a.nop(2)
    a.valu('v_cmp_gt_u32', 'vcc', 32, 'v0')
    a.salu('s_and_saveexec_b64', S(10, 2), 'vcc')
    a.branch('s_cbranch_execz', label + '_end')
    a.salu('s_lshl_b32', 's9', 's3', 7)
    a.valu('v_lshlrev_b32', 'v22', 2, 'v0')
    a.buf_store('buffer_store_dword', 'v24', 'v22', S(48, 4), 's9')
    end_kernel(a, label)
    KERNELS.append((label, (NWG, 1, 1), (256, 1, 1), 16384, 128, 128, 96))


def wave_sum(a, v, tmp, sbase):
    a.valu('v_add_f32', tmp, v, v, mods='quad_perm:[1,0,3,2] row_mask:0xf bank_mask:0xf', dpp=True)
    a.valu('v_add_f32', v, tmp, tmp, mods='quad_perm:[2,3,0,1] row_mask:0xf bank_mask:0xf', dpp=True)
    a.valu('v_add_f32', tmp, v, v, mods='row_half_mirror row_mask:0xf bank_mask:0xf', dpp=True)
    a.valu('v_add_f32', v, tmp, tmp, mods='row_mirror row_mask:0xf bank_mask:0xf', dpp=True)
    for i in range(4):
        a.readlane('v_readlane_b32', S(sbase + i), v, 16 * i)
    a.valu('v_mov_b32', v, S(sbase))
    for i in range(1, 4):
        a.valu('v_add_f32', v, S(sbase + i), v)


def k_ln(a, label, src_ptr, src_off, dst_off, shift_idx, scale_idx, touch=None, tiled=False):
    NWG = 512
    begin_kernel(a, label, NWG)
    a.valu('v_lshrrev_b32', 'v1', 6, 'v0')
    a.valu('v_and_b32', 'v2', 63, 'v0')
    a.salu('s_lshl_b32', 's3', 's2', 2)
    a.valu('v_add_u32', 'v1', 's3', 'v1')
    a.valu('v_lshlrev_b32', 'v3', 11, 'v1')
    a.valu('v_lshl_add_u32', 'v3', 'v2', 4, 'v3')
    a.valu('v_lshlrev_b32', 'v4', 5, 'v2')
    a.waitcnt(lgkm=0)
    srd(a, 40, src_ptr, src_off, 2048 * 2048)
    srd(a, 44, P_WS, dst_off, 2048 * 2048)
    srd(a, 48, P_WS, WS_MOD, 6144 * 4)
    a.buf_load('buffer_load_dwordx4', V(8, 4), 'v3', S(40, 4))
    a.buf_load('buffer_load_dwordx4', V(12, 4), 'v3', S(40, 4), off=1024)
    a.salu('s_mov_b32', 's4', scale_idx * 4096)
    a.salu('s_mov_b32', 's5', shift_idx * 4096)
    for h in range(2):
        for q in range(2):
            a.buf_load('buffer_load_dwordx4', V(64 + 8 * h + 4 * q, 4), 'v4', S(48, 4), 's4', off=h * 2048 + q * 16)
    for h in range(2):
        for q in range(2):
            a.buf_load('buffer_load_dwordx4', V(80 + 8 * h + 4 * q, 4), 'v4', S(48, 4), 's5', off=h * 2048 + q * 16)
    extra = 0
    if touch:
        a.valu('v_lshrrev_b32', 'v40', 6, 'v0')
        a.readlane('v_readfirstlane_b32', 's78', 'v40')
        a.salu('s_lshl_b32', 's79', 's2', 2)
        a.salu('s_add_u32', 's78', 's78', 's79')
        touch_weights(a, 's78', 'v2', touch, 52, 40)
        extra = len(touch)
    a.waitcnt(vm=8 + extra)
    for d in range(8):
        a.valu('v_lshlrev_b32', V(16 + 2 * d), 16, V(8 + d))
        a.valu('v_and_b32', V(17 + 2 * d), '0xffff0000', V(8 + d))
    a.valu('v_add_f32', 'v32', 'v16', 'v17')
    for i in range(2, 16):
        a.valu('v_add_f32', 'v32', 'v32', V(16 + i))
    wave_sum(a, 'v32', 'v33', 8)
    a.valu('v_mul_f32', 'v32', hexf(1.0 / 1024), 'v32')
    a.valu('v_sub_f32', 'v34', 'v16', 'v32')
    a.valu('v_mul_f32', 'v35', 'v34', 'v34')
    for i in range(1, 16):
        a.valu('v_sub_f32', 'v34', V(16 + i), 'v32')
        a.valu('v_fmac_f32', 'v35', 'v34', 'v34')
    wave_sum(a, 'v35', 'v33', 8)
    a.valu('v_mul_f32', 'v35', hexf(1.0 / 1024), 'v35')
    bf16_round(a, 'v32', 'v32')
    bf16_round(a, 'v35', 'v35')
    a.valu('v_add_f32', 'v35', hexf(1e-5), 'v35')
    bf16_round(a, 'v35', 'v35')
    a.valu('v_sqrt_f32', 'v35', 'v35')
    bf16_round(a, 'v35', 'v35')
    a.valu('v_rcp_f32', 'v36', 'v35')
    a.waitcnt(vm=extra)
    for i in range(16):
        x = V(16 + i)
        a.valu('v_sub_f32', x, x, 'v32')
        bf16_round(a, x, x)
        a.valu('v_mul_f32', x, x, 'v36')
        bf16_round(a, x, x)
        a.valu('v_mul_f32', x, x, V(64 + i))
        bf16_round(a, x, x)
        a.valu('v_add_f32', x, x, V(80 + i))
    for d in range(8):
        a.valu('v_cvt_pk_bf16_f32', V(8 + d), V(16 + 2 * d), V(17 + 2 * d))
    if tiled:
        a.valu('v_lshrrev_b32', 'v5', 2, 'v2')
        a.valu('v_lshlrev_b32', 'v5', 17, 'v5')
        a.valu('v_lshl_add_u32', 'v5', 'v1', 6, 'v5')
        a.valu('v_and_b32', 'v6', 3, 'v2')
        a.valu('v_lshl_add_u32', 'v5', 'v6', 4, 'v5')
        a.valu('v_add_u32', 'v6', 16 * 131072, 'v5')
        a.buf_store('buffer_store_dwordx4', V(8, 4), 'v5', S(44, 4))
        a.buf_store('buffer_store_dwordx4', V(12, 4), 'v6', S(44, 4))
    else:
        a.buf_store('buffer_store_dwordx4', V(8, 4), 'v3', S(44, 4))
        a.buf_store('buffer_store_dwordx4', V(12, 4), 'v3', S(44, 4), off=1024)
    end_kernel(a, label)
    KERNELS.append((label, (NWG, 1, 1), (256, 1, 1), 0, 96, 96, 96))


class Gemm:
    pass


STAMP = os.environ.get('STAMP', '')
stamp_n = [0]


def stamp(a, vreg='v31'):
    if not STAMP:
        return
    a.other('s_memtime s[80:81]')
    a.waitcnt(lgkm=0)
    a.valu('v_writelane_b32', vreg, 's80', stamp_n[0])
    stamp_n[0] += 1


def stamp_dump(a, wg, vreg='v31'):
    if not STAMP:
        return
    a.salu('s_cmp_lg_u32', 's2', wg, nodst=True)
    a.branch('s_cbranch_scc1', 'sd%d' % id(stamp_n) + '_%d' % stamp_n[0] + '_%d' % len(a.lines))
    lb = 'sd%d' % id(stamp_n) + '_%d' % stamp_n[0] + '_%d' % (len(a.lines) - 1)
    a.valu('v_lshrrev_b32', 'v30', 6, 'v0')
    a.valu('v_cmp_eq_u32', 'vcc', int(os.environ.get('STAMPWAVE', '0')), 'v30')
    a.salu('s_and_saveexec_b64', S(82, 2), 'vcc')
    a.branch('s_cbranch_execz', lb)
    srd(a, 84, P_DBG, 0, 256)
    a.valu('v_and_b32', 'v30', 63, 'v0')
    a.valu('v_lshlrev_b32', 'v30', 2, 'v30')
    a.buf_store('buffer_store_dword', vreg, 'v30', S(84, 4))
    a.label(lb)
    a.salu('s_mov_b64', 'exec', -1)
    stamp_n[0] = 0


ABL = os.environ.get('ABL', '')


def interleave(a, mf, others, front=0):
    n = len(mf)
    fr = others[:front]
    rest = others[front:]
    per = max(1, -(-len(fr) // n))
    j = 0
    jr = 0
    for i, m in enumerate(mf):
        m()
        for _ in range(per):
            if j < len(fr):
                fr[j]()
                j += 1
        if j >= len(fr) and jr < len(rest):
            left = n - i
            cnt = -(-(len(rest) - jr) // left)
            for _ in range(cnt):
                if jr < len(rest):
                    rest[jr]()
                    jr += 1
    while j < len(fr):
        fr[j]()
        j += 1
    while jr < len(rest):
        rest[jr]()
        jr += 1


def k_gemm(a, g):
    label = g.label
    a.abl = ABL if not ABL.startswith('A') else ''
    NWG = 256
    TM = 2
    NT = len(g.tiles)
    NBUF = g.nbuf
    BK = getattr(g, 'bk', 64)
    NKS = BK // 32
    XB = 128 * BK * 2
    BUFSZ = XB + g.wbytes
    S_ = g.K // BK
    NPX = XB // 8192
    NPW = g.npw
    P = NPX + NPW
    groups = g.groups
    G = len(groups)
    assert S_ % NBUF == 0 and S_ >= 2 * NBUF
    begin_kernel(a, label, NWG)
    a.salu('s_and_b32', 's3', 's2', 3)
    a.salu('s_lshl_b32', 's3', 's3', 2)
    a.salu('s_bfe_u32', 's4', 's2', '0x20003')
    a.salu('s_add_u32', 's3', 's3', 's4')
    a.salu('s_bfe_u32', 's4', 's2', '0x10002')
    a.salu('s_lshl_b32', 's4', 's4', 3)
    a.salu('s_lshr_b32', 's5', 's2', 5)
    a.salu('s_add_u32', 's4', 's4', 's5')
    SM, SN = 's3', 's4'
    a.valu('v_lshrrev_b32', 'v1', 6, 'v0')
    a.readlane('v_readfirstlane_b32', 's6', 'v1')
    a.valu('v_and_b32', 'v2', 63, 'v0')
    SW = 's6'
    a.salu('s_and_b32', 's7', SW, 3)
    a.salu('s_lshr_b32', 's8', SW, 2)
    SWM, SWN = 's7', 's8'
    a.waitcnt(lgkm=0)
    stamp(a)
    a.salu('s_mul_i32', 's9', SM, 128 * (g.lda if BK == 64 else 64))
    a.salu('s_add_u32', 's10', 's9', g.x_off)
    a.salu('s_sub_u32', 's11', 2048 * g.lda, 's9')
    srd(a, 40, g.x_ptr, 's10', 's11')
    for i, (ptr, cpn, cc, tot) in enumerate(g.wsrd):
        a.salu('s_mul_i32', 's9', SN, cpn)
        a.salu('s_add_u32', 's9', 's9', cc)
        a.salu('s_sub_u32', 's11', tot, 's9')
        srd(a, 44 + 4 * i, ptr, 's9', 's11')
    L = 'v2'
    a.valu('v_lshrrev_b32', 'v10', 3, L)
    a.valu('v_lshrrev_b32', 'v11', 4, L)
    a.valu('v_bfe_u32', 'v12', L, 2, 2)
    a.valu('v_and_b32', 'v15', 3, L)
    if BK == 64:
        a.salu('s_and_b32', 's9', SW, 1)
        a.salu('s_lshl_b32', 's9', 's9', 2)
        a.valu('v_add_u32', 'v13', 's9', 'v11')
        a.valu('v_and_b32', 'v14', 7, L)
        a.valu('v_xor_b32', 'v13', 'v13', 'v14')
        a.salu('s_lshl_b32', 's9', SW, 3)
        a.valu('v_add_u32', 'v14', 's9', 'v10')
        a.salu('s_mov_b32', 's9', g.lda)
        a.valu('v_mul_lo_u32', 'v14', 'v14', 's9')
        a.valu('v_lshl_add_u32', 'v4', 'v13', 4, 'v14')
        a.valu('v_add_u32', 'v5', 64 * g.lda, 'v4')
    else:
        a.valu('v_lshrrev_b32', 'v13', 1, 'v11')
        a.valu('v_xor_b32', 'v14', 'v13', 'v11')
        a.valu('v_and_b32', 'v14', 1, 'v14')
        a.valu('v_lshl_add_u32', 'v13', 'v14', 1, 'v13')
        a.valu('v_xor_b32', 'v13', 'v13', 'v15')
        a.valu('v_lshrrev_b32', 'v14', 2, L)
        a.valu('v_lshlrev_b32', 'v14', 6, 'v14')
        a.valu('v_lshl_add_u32', 'v4', 'v13', 4, 'v14')
        a.salu('s_lshl_b32', 's9', SW, 10)
        a.valu('v_add_u32', 'v4', 's9', 'v4')
    WV = 32
    g.wdma_setup(a, g, WV, SW)
    XR = 16
    if BK == 64:
        a.valu('v_and_b32', 'v13', 15, L)
        a.valu('v_lshrrev_b32', 'v14', 1, 'v13')
        a.valu('v_xor_b32', 'v14', 'v14', 'v11')
        a.valu('v_lshlrev_b32', 'v13', 7, 'v13')
        a.valu('v_lshl_add_u32', 'v13', 'v14', 4, 'v13')
        a.salu('s_lshl_b32', 's9', SWM, 12)
        a.valu('v_add_u32', 'v13', 's9', 'v13')
        for b in range(NBUF):
            a.valu('v_add_u32', V(XR + 2 * b), b * BUFSZ, 'v13')
            a.valu('v_xor_b32', V(XR + 2 * b + 1), 64, V(XR + 2 * b))
        XTS = 2048
    else:
        a.valu('v_lshrrev_b32', 'v13', 1, 'v12')
        a.valu('v_xor_b32', 'v14', 'v13', 'v12')
        a.valu('v_and_b32', 'v14', 1, 'v14')
        a.valu('v_lshl_add_u32', 'v13', 'v14', 1, 'v13')
        a.valu('v_xor_b32', 'v14', 'v13', 'v11')
        a.valu('v_and_b32', 'v13', 15, L)
        a.valu('v_lshlrev_b32', 'v13', 6, 'v13')
        a.valu('v_lshl_add_u32', 'v13', 'v14', 4, 'v13')
        a.salu('s_lshl_b32', 's9', SWM, 11)
        a.valu('v_add_u32', 'v13', 's9', 'v13')
        for b in range(NBUF):
            a.valu('v_add_u32', V(XR + 2 * b), b * BUFSZ, 'v13')
        XTS = 1024
    WR = 40
    nsel = g.nsel
    g.wread_setup(a, g, 8, SWN)
    for b in range(NBUF):
        for s_ in range(nsel):
            a.valu('v_add_u32', V(WR + nsel * b + s_), b * BUFSZ + XB, V(24 + s_))
    assert WR + nsel * NBUF <= 64
    a.salu('s_lshl_b32', 's12', SW, 10)
    SWB = 's12'
    SWW = 's75'
    a.salu('s_mov_b32', 's13', 0)
    a.salu('s_mov_b32', 's14', 0)

    FB = 64
    MG = max(len(x) for x in groups)
    SU = getattr(g, 'stage_unit', False)
    if SU:
        SETSZ = 2 * (TM + NT) * 4

        def fxs(par, ks, tm):
            return V(FB + par * SETSZ + ks * (TM + NT) * 4 + tm * 4, 4)

        def fws(par, ks, t, hh=None):
            base = FB + par * SETSZ + ks * (TM + NT) * 4 + TM * 4 + t * 4
            if hh is None:
                return V(base, 4)
            return V(base + 2 * hh, 2)
        NV = FB + 2 * SETSZ
    else:
        NV = FB + 16 + 2 * MG * 4

    def fx(par, tm):
        return V(FB + par * 8 + tm * 4, 4)

    def fw(par, i, hh=None):
        base = FB + 16 + par * MG * 4 + i * 4
        if hh is None:
            return V(base, 4)
        return V(base + 2 * hh, 2)

    def acc(t, tm):
        return A((t * TM + tm) * 4, 4)

    lab_id = [0]

    def guarded(fs, cond):
        def f():
            lab_id[0] += 1
            lb = '%s_g%d' % (label, lab_id[0])
            a.branch('s_cbranch_vccz' if cond == 'dma' else 's_cbranch_vccnz', lb)
            for x in fs:
                x()
            a.label(lb)
        return f

    def dma_list(buf):
        out = []
        for j in range(NPX):
            def f(j=j):
                a.salu('s_add_u32', 'm0', SWB, buf * BUFSZ + j * 8192)
                a.dma(V(4 + j), S(40, 4), 's13')
            out.append(f)
        for (si, vo, ldsoff) in g.wdma:
            def f(si=si, vo=vo, ldsoff=ldsoff):
                if isinstance(ldsoff, str):
                    a.salu('s_add_u32', 'm0', ldsoff, buf * BUFSZ + XB)
                else:
                    a.salu('s_add_u32', 'm0', SWW, buf * BUFSZ + XB + ldsoff)
                a.dma(V(WV + vo), S(44 + 4 * si, 4), 's14')
            out.append(f)

        def adv():
            a.salu('s_add_u32', 's13', 's13', 128 if BK == 64 else 131072)
            a.salu('s_add_u32', 's14', 's14', BK * g.ldw)
        out.append(adv)
        return out

    def x_reads(par, buf, ks):
        return [lambda tm=tm: a.ds_read('ds_read_b128', fx(par, tm), V(XR + 2 * buf + ks), tm * XTS) for tm in range(TM)]

    def w_reads(par, buf, ks, gi):
        out = []
        for i, t in enumerate(groups[gi]):
            sel, imm = g.tiles[t]
            for hh in range(2):
                out.append(lambda i=i, sel=sel, imm=imm, hh=hh: a.ds_read(
                    'ds_read_b64_tr_b16', fw(par, i, hh), V(WR + nsel * buf + sel), imm + ks * g.kstep + hh * g.hstep))
        return out

    def mfma_list(xpar, wpar, gi):
        out = []
        for i, t in enumerate(groups[gi]):
            for tm in range(TM):
                if g.swapped[t]:
                    out.append(lambda t=t, tm=tm, i=i: a.mfma('16x16x32', acc(t, tm), fx(xpar, tm), fw(wpar, i), acc(t, tm)))
                else:
                    out.append(lambda t=t, tm=tm, i=i: a.mfma('16x16x32', acc(t, tm), fw(wpar, i), fx(xpar, tm), acc(t, tm)))
        return out

    def su_reads(par, buf):
        out = []
        for ks in range(2):
            for tm in range(TM):
                out.append(lambda tm=tm, ks=ks: a.ds_read('ds_read_b128', fxs(par, ks, tm), V(XR + 2 * buf + ks), tm * 2048))
            for t in range(NT):
                sel, imm = g.tiles[t]
                for hh in range(2):
                    out.append(lambda t=t, sel=sel, imm=imm, hh=hh, ks=ks: a.ds_read(
                        'ds_read_b64_tr_b16', fws(par, ks, t, hh), V(WR + nsel * buf + sel), imm + ks * g.kstep + hh * g.hstep))
        return out

    def su_mfmas(par):
        out = []
        for ks in range(2):
            for t in range(NT):
                for tm in range(TM):
                    if g.swapped[t]:
                        out.append(lambda t=t, tm=tm, ks=ks: a.mfma('16x16x32', acc(t, tm), fxs(par, ks, tm), fws(par, ks, t), acc(t, tm)))
                    else:
                        out.append(lambda t=t, tm=tm, ks=ks: a.mfma('16x16x32', acc(t, tm), fws(par, ks, t), fxs(par, ks, tm), acc(t, tm)))
        return out

    def su_stage(s, abs_s):
        buf = s % NBUF
        nxt = (s + 1) % NBUF
        par = s & 1
        if abs_s is not None and abs_s == S_ - 1:
            a.waitcnt(lgkm=0)
            for m in su_mfmas(par):
                m()
            return
        if abs_s is None:
            vm = P * (NBUF - 2)
        else:
            vm = P * (min(S_ - 1, abs_s + NBUF - 1) - (abs_s + 1)) + extra_vm[0]
        st = abs_s is not None and abs_s < 18
        if st:
            stamp(a)
        a.waitcnt(vm=vm, lgkm=0)
        if st:
            stamp(a)
        a.barrier()
        if st:
            stamp(a)
        reads = su_reads(par ^ 1, nxt)
        d = dma_list(buf) if (abs_s is None or abs_s + NBUF <= S_ - 1) else []
        others = []
        nr, nd = len(reads), len(d)
        j = 0
        for i, r_ in enumerate(reads):
            others.append(r_)
            while j < (i + 1) * nd // nr:
                others.append(d[j])
                j += 1
        others += d[j:]
        interleave(a, su_mfmas(par), others)

    lab_id = [0]
    extra_vm = [0]
    if 'prio' in os.environ.get('OPT', ''):
        a.salu('s_cmp_ge_u32', SW, 4, nodst=True)
        a.branch('s_cbranch_scc0', label + '_prio')
        a.other('s_setprio 1')
        a.label(label + '_prio')

    def guarded(fs, lo):
        def f():
            lab_id[0] += 1
            lb = '%s_g%d' % (label, lab_id[0])
            a.branch('s_cbranch_vccz' if lo else 's_cbranch_vccnz', lb)
            for x in fs:
                x()
            a.label(lb)
        return f

    STAG = getattr(g, 'stagger', False)
    if STAG:
        a.salu('s_cmp_lt_u32', SW, 4, nodst=True)
        a.salu('s_cselect_b64', 'vcc', -1, 0)

    NU = NKS * G
    SPREAD = NBUF >= 3 and not SU

    def split_dma(buf):
        d = dma_list(buf)
        if STAG:
            p0 = [guarded([x], True) for x in d[:-1]]
            p1 = [guarded([x], False) for x in d[:-1]] + [d[-1]]
            return [p0, p1] + [[] for _ in range(NU - 2)]
        if not SPREAD:
            return [d] + [[] for _ in range(NU - 1)]
        parts = []
        n = len(d)
        for i in range(NU):
            parts.append(d[i * n // NU:(i + 1) * n // NU])
        return parts

    stamp(a)
    for s in range(NBUF - 1):
        for f in dma_list(s):
            f()
    for f in split_dma(NBUF - 1)[0]:
        f()
    n_first = len([1 for f in split_dma(NBUF - 1)[0]])
    part0_dma = min(n_first, P)
    if STAG:
        part0_dma = 0
    NACC = TM * NT * 4
    for i in range(NACC):
        a.valu('v_accvgpr_write_b32', A(i), 0)
    stamp(a)
    a.waitcnt(vm=P * (NBUF - 2) + part0_dma)
    a.barrier()
    stamp(a)
    if SU:
        for f in su_reads(0, 0):
            f()
    else:
        for f in x_reads(0, 0, 0) + w_reads(0, 0, 0, 0):
            f()

    def stage(s, abs_s):
        if SU:
            return su_stage(s, abs_s)
        buf = s % NBUF
        nxt = (s + 1) % NBUF
        prev = (s - 1) % NBUF
        units = [(ks, gi) for ks in range(NKS) for gi in range(G)]
        have_pending = abs_s is None or (abs_s - 1 + NBUF <= S_ - 1)
        pend = split_dma(prev) if have_pending else [[] for _ in range(NU)]
        for u, (ks, gi) in enumerate(units):
            wpar = u & 1
            xpar = (s * NKS + ks) & 1
            lastu = (u == len(units) - 1)
            if lastu and abs_s is not None and abs_s == S_ - 1:
                a.waitcnt(lgkm=0)
                for m in mfma_list(xpar, wpar, gi):
                    m()
                return
            if lastu:
                if abs_s is None:
                    vm = P * (NBUF - 2)
                else:
                    vm = P * (min(S_ - 1, abs_s + NBUF - 1) - (abs_s + 1))
                a.waitcnt(lgkm=0)
                st = abs_s is not None and abs_s < 18
                if st:
                    stamp(a)
                a.waitcnt(vm=vm)
                if st:
                    stamp(a)
                a.barrier()
                if st:
                    stamp(a)
                reads = x_reads(((s + 1) * NKS) & 1, nxt, 0) + w_reads(wpar ^ 1, nxt, 0, 0)
                others = list(reads)
                if abs_s is None or abs_s + NBUF <= S_ - 1:
                    others += split_dma(buf)[0]
                interleave(a, mfma_list(xpar, wpar, gi), others, front=len(reads))
            else:
                nks, ngi = units[u + 1]
                reads = []
                if nks != ks:
                    reads += x_reads(nks, buf, nks)
                reads += w_reads(wpar ^ 1, buf, nks, ngi)
                a.waitcnt(lgkm=0)
                interleave(a, mfma_list(xpar, wpar, gi), reads + pend[u + 1], front=len(reads))

    ntail = NBUF
    if STAMP == 'full':
        ntail = S_
    nloop = (S_ - ntail) // NBUF
    if nloop:
        a.salu('s_mov_b32', 's15', nloop)
        a.label(label + '_loop')
        for s in range(NBUF):
            stage(s, None)
        a.salu('s_sub_u32', 's15', 's15', 1)
        a.salu('s_cmp_lg_u32', 's15', 0, nodst=True)
        a.branch('s_cbranch_scc1', label + '_loop')
    stamp(a)
    if hasattr(g.epilogue, 'pre'):
        sv = a.abl
        a.abl = ''
        a.nop(4)
        extra_vm[0] = g.epilogue.pre(a, g, TM, SM, SN, SWM, SWN)
        a.abl = sv
    for s in range(S_ - ntail, S_):
        stage(s, s)
    a.nop(12)
    stamp(a)
    a.abl = ''
    g.epilogue(a, g, acc, TM, SM, SN, SWM, SWN)
    stamp(a)
    a.waitcnt(vm=0)
    stamp(a)
    stamp_dump(a, int(os.environ.get('STAMPWG', '0')))
    end_kernel(a, label)
    ao = max(NV, 128, 148 if hasattr(g.epilogue, 'pre') else 0)
    ao = (ao + 3) // 4 * 4
    assert ao + NACC <= 256, (label, ao, NACC)
    KERNELS.append((label, (NWG, 1, 1), (512, 1, 1), NBUF * BUFSZ, ao + NACC, ao, 96))


def wdma_setup_128(a, g, WV, sw):
    a.valu('v_and_b32', 'v13', 1, 'v11')
    a.salu('s_and_b32', 's9', sw, 1)
    a.salu('s_lshl_b32', 's9', 's9', 1)
    a.valu('v_add_u32', 'v13', 's9', 'v13')
    a.valu('v_bfe_u32', 'v14', 'v2', 1, 2)
    a.valu('v_xor_b32', 'v13', 'v13', 'v14')
    a.valu('v_lshlrev_b32', 'v13', 5, 'v13')
    a.valu('v_and_b32', 'v14', 1, 'v2')
    a.valu('v_lshl_add_u32', 'v13', 'v14', 4, 'v13')
    a.salu('s_lshl_b32', 's9', sw, 3)
    a.valu('v_add_u32', 'v14', 's9', 'v10')
    a.salu('s_mov_b32', 's9', g.ldw)
    a.valu('v_mul_lo_u32', 'v14', 'v14', 's9')
    a.valu('v_add_u32', V(WV), 'v13', 'v14')
    a.salu('s_lshl_b32', 's75', sw, 10)


def wread_setup_128(a, g, _unused, swn):
    a.valu('v_lshrrev_b32', 'v13', 1, 'v12')
    a.valu('v_and_b32', 'v14', 1, 'v11')
    a.valu('v_lshl_add_u32', 'v13', 'v14', 1, 'v13')
    a.salu('s_lshl_b32', 's9', swn, 1)
    a.valu('v_xor_b32', 'v13', 's9', 'v13')
    a.valu('v_lshl_add_u32', 'v14', 'v11', 3, 'v12')
    a.valu('v_lshlrev_b32', 'v14', 7, 'v14')
    a.valu('v_lshl_add_u32', 'v14', 'v15', 3, 'v14')
    a.valu('v_lshl_add_u32', 'v24', 'v13', 5, 'v14')
    a.valu('v_xor_b32', 'v25', 32, 'v24')


def wdma_setup_448(a, g, WV, sw):
    a.salu('s_and_b32', 's76', sw, 3)
    a.salu('s_cmp_lt_u32', sw, 4, nodst=True)
    for i in range(4):
        a.salu('s_cselect_b32', S(44 + i), S(44 + i), S(48 + i))
    a.salu('s_cselect_b32', 's75', 0, 28672)
    a.salu('s_lshl_b32', 's9', 's76', 10)
    a.salu('s_add_u32', 's75', 's75', 's9')
    a.salu('s_mov_b32', 's10', 37450)
    a.salu('s_mov_b32', 's11', g.ldw)
    for j in range(7):
        a.salu('s_lshl_b32', 's9', 's76', 6)
        a.salu('s_add_u32', 's9', 's9', 256 * j)
        a.valu('v_add_u32', 'v13', 's9', 'v2')
        a.valu('v_mul_lo_u32', 'v14', 'v13', 's10')
        a.valu('v_lshrrev_b32', 'v14', 20, 'v14')
        a.valu('v_mul_u32_u24', 'v9', 28, 'v14')
        a.valu('v_sub_u32', 'v13', 'v13', 'v9')
        a.valu('v_bfe_u32', 'v9', 'v14', 3, 1)
        a.valu('v_lshlrev_b32', 'v9', 1, 'v9')
        a.valu('v_xor_b32', 'v13', 'v13', 'v9')
        a.valu('v_mul_lo_u32', 'v14', 'v14', 's11')
        a.valu('v_lshl_add_u32', V(WV + j), 'v13', 4, 'v14')


def wdma_setup_448b(a, g, WV, sw):
    a.salu('s_and_b32', 's76', sw, 3)
    a.salu('s_cmp_lt_u32', sw, 4, nodst=True)
    for i in range(4):
        a.salu('s_cselect_b32', S(44 + i), S(44 + i), S(48 + i))
    a.salu('s_cselect_b32', 's75', 0, 14336)
    a.salu('s_lshl_b32', 's9', 's76', 10)
    a.salu('s_add_u32', 's75', 's75', 's9')
    a.salu('s_cmp_lt_u32', 's76', 2, nodst=True)
    a.salu('s_cselect_b32', 's77', 3, 2)
    a.salu('s_lshl_b32', 's77', 's77', 8)
    a.salu('s_lshl_b32', 's79', 's77', 4)
    a.salu('s_add_u32', 's79', 's79', 's75')
    a.salu('s_mov_b32', 's10', 37450)
    a.salu('s_mov_b32', 's11', g.ldw)
    for j in range(4):
        a.salu('s_lshl_b32', 's9', 's76', 6)
        if j < 3:
            a.salu('s_add_u32', 's9', 's9', 256 * j)
        else:
            a.salu('s_add_u32', 's9', 's9', 's77')
        a.valu('v_add_u32', 'v13', 's9', 'v2')
        a.valu('v_mul_lo_u32', 'v14', 'v13', 's10')
        a.valu('v_lshrrev_b32', 'v14', 20, 'v14')
        a.valu('v_mul_u32_u24', 'v9', 28, 'v14')
        a.valu('v_sub_u32', 'v13', 'v13', 'v9')
        a.valu('v_bfe_u32', 'v9', 'v14', 3, 1)
        a.valu('v_lshlrev_b32', 'v9', 1, 'v9')
        a.valu('v_xor_b32', 'v13', 'v13', 'v9')
        a.valu('v_mul_lo_u32', 'v14', 'v14', 's11')
        a.valu('v_lshl_add_u32', V(WV + j), 'v13', 4, 'v14')


def wread_setup_448(a, g, _unused, swn):
    a.valu('v_lshl_add_u32', 'v14', 'v11', 3, 'v12')
    a.valu('v_mul_u32_u24', 'v14', 448, 'v14')
    a.valu('v_lshl_add_u32', 'v14', 'v15', 3, 'v14')
    a.salu('s_mul_i32', 's9', swn, 224)
    a.valu('v_add_u32', 'v14', 's9', 'v14')
    a.valu('v_and_b32', 'v13', 1, 'v11')
    a.valu('v_lshlrev_b32', 'v13', 5, 'v13')
    a.valu('v_add_u32', 'v24', 'v14', 'v13')
    a.valu('v_sub_u32', 'v25', 'v14', 'v13')
    a.salu('s_cmp_eq_u32', swn, 0, nodst=True)
    a.branch('s_cbranch_scc1', g.label + '_wrs')
    a.valu('v_mov_b32', 'v13', 'v24')
    a.valu('v_mov_b32', 'v24', 'v25')
    a.valu('v_mov_b32', 'v25', 'v13')
    a.label(g.label + '_wrs')
    a.nop(2)


def make_touch_setup(wrow_lines, wmats):
    def f(a, g, sw):
        nl = 512 + 64 * wrow_lines * len(wmats)
        n = nl // 128
        assert nl % 128 == 0 and 512 % n == 0 and (64 * wrow_lines) % n == 0
        a.salu('s_lshr_b32', 's9', 's2', 3)
        a.salu('s_lshl_b32', 's9', 's9', 2)
        a.salu('s_and_b32', 's10', sw, 3)
        a.salu('s_add_u32', 's9', 's9', 's10')
        a.salu('s_mul_i32', 's9', 's9', n)
        a.valu('v_add_u32', 'v13', 's9', 'v2')
        lab = g.label + '_ts'
        a.salu('s_cmp_lt_u32', 's9', 512, nodst=True)
        a.branch('s_cbranch_scc0', lab + '_w')
        a.salu('s_and_b32', 's10', 's2', 3)
        a.salu('s_mul_i32', 's10', 's10', 512 * g.lda)
        a.salu('s_add_u32', 's11', 's10', g.x_off)
        a.salu('s_sub_u32', 's10', 2048 * g.lda, 's10')
        srd(a, 56, g.x_ptr, 's11', 's10')
        a.salu('s_mov_b32', 's10', g.lda)
        a.valu('v_mul_lo_u32', 'v3', 'v13', 's10')
        a.salu('s_mov_b32', 's74', 128)
        a.branch('s_branch', lab + '_e')
        a.label(lab + '_w')
        a.reset_hist()
        a.salu('s_sub_u32', 's9', 's9', 512)
        a.valu('v_subrev_u32', 'v13', 512, 'v13')
        per = 64 * wrow_lines
        a.salu('s_bfe_u32', 's72', 's2', '0x10002')
        for mi, (ptr, tot, pof, segs) in enumerate(wmats):
            if mi + 1 < len(wmats):
                a.salu('s_cmp_lt_u32', 's9', per, nodst=True)
                a.branch('s_cbranch_scc0', lab + '_w%d' % (mi + 1))
            a.salu('s_mul_i32', 's10', 's72', pof)
            a.salu('s_sub_u32', 's11', tot, 's10')
            srd(a, 56, ptr, 's10', 's11')
            if mi + 1 < len(wmats):
                a.branch('s_branch', lab + '_wd')
                a.label(lab + '_w%d' % (mi + 1))
                a.reset_hist()
                a.salu('s_sub_u32', 's9', 's9', per)
                a.valu('v_subrev_u32', 'v13', per, 'v13')
        a.label(lab + '_wd')
        a.reset_hist()
        a.nop(2)
        if wrow_lines & (wrow_lines - 1) == 0:
            a.valu('v_lshrrev_b32', 'v14', wrow_lines.bit_length() - 1, 'v13')
        else:
            a.salu('s_mov_b32', 's10', {24: 43691, 28: 37450}[wrow_lines])
            a.valu('v_mul_lo_u32', 'v14', 'v13', 's10')
            a.valu('v_lshrrev_b32', 'v14', 20, 'v14')
        a.valu('v_mul_u32_u24', 'v9', wrow_lines, 'v14')
        a.valu('v_sub_u32', 'v13', 'v13', 'v9')
        a.salu('s_mov_b32', 's10', g.ldw)
        a.valu('v_mul_lo_u32', 'v3', 'v14', 's10')
        segs = wmats[0][3]
        if segs > 1:
            a.valu('v_lshrrev_b32', 'v14', 3, 'v13')
            a.valu('v_lshl_add_u32', 'v3', 'v14', 11, 'v3')
            a.valu('v_and_b32', 'v13', 7, 'v13')
        a.valu('v_lshl_add_u32', 'v3', 'v13', 7, 'v3')
        a.salu('s_mov_b32', 's74', 64 * g.ldw)
        a.label(lab + '_e')
        a.reset_hist()
        a.nop(2)
        a.valu('v_cmp_gt_u32', 'vcc', n, 'v2')
        a.valu('v_mov_b32', 'v13', '0x7f000000')
        a.valu('v_cndmask_b32', 'v3', 'v13', 'v3')
        a.salu('s_mov_b32', 's73', 0)
    return f


def ep_lane_consts(a):
    a.valu('v_and_b32', 'v10', 15, 'v2')
    a.valu('v_lshrrev_b32', 'v11', 4, 'v2')
    a.valu('v_and_b32', 'v12', 1, 'v11')
    a.valu('v_lshlrev_b32', 'v12', 5, 'v12')
    a.valu('v_lshrrev_b32', 'v13', 1, 'v11')
    a.valu('v_lshl_add_u32', 'v12', 'v13', 4, 'v12')


def read_acc(a, dst, accr):
    lo = int(accr[2:].split(':')[0])
    for i in range(4):
        a.valu('v_accvgpr_read_b32', V(dst + i), A(lo + i))


def ep_qkv(a, g, acc, TM, SM, SN, SWM, SWN):
    ep_lane_consts(a)
    a.salu('s_lshl_b32', 's9', SN, 1)
    a.salu('s_add_u32', 's9', 's9', SWN)
    a.salu('s_lshl_b32', 's10', SM, 7)
    a.salu('s_lshl_b32', 's11', SWM, 5)
    a.salu('s_add_u32', 's10', 's10', 's11')
    a.salu('s_lshl_b32', 's11', 's9', 17)
    srd(a, 60, P_WS, WS_Q, 4 * MB)
    srd(a, 64, P_WS, WS_K, 4 * MB)
    srd(a, 68, P_WS, WS_VT, 4 * MB)
    a.valu('v_add_u32', 'v14', 's10', 'v10')
    a.valu('v_lshlrev_b32', 'v14', 6, 'v14')
    a.valu('v_add_u32', 'v14', 'v14', 'v12')
    a.valu('v_add_u32', 'v14', 's11', 'v14')
    a.salu('s_mov_b32', 's12', hexf(32 ** -0.5 * 1.4426950408889634))
    T = 32
    for seg in range(2):
        for tm in range(TM):
            b = T + (seg * TM + tm) * 16
            read_acc(a, b, acc(2 * seg, tm))
            read_acc(a, b + 4, acc(2 * seg + 1, tm))
            if seg == 0:
                for i in range(8):
                    a.valu('v_mul_f32', V(b + i), 's12', V(b + i))
            for i in range(4):
                a.valu('v_cvt_pk_bf16_f32', V(b + 8 + i), V(b + 2 * i), V(b + 2 * i + 1))
            a.permlane('v_permlane16_swap_b32', V(b + 8), V(b + 10))
            a.permlane('v_permlane16_swap_b32', V(b + 9), V(b + 11))
            a.buf_store('buffer_store_dwordx4', V(b + 8, 4), 'v14', S(60 + 4 * seg, 4), off=tm * 1024)
    a.salu('s_lshl_b32', 's12', 's10', 6)
    a.salu('s_add_u32', 's12', 's12', 's11')
    a.valu('v_lshrrev_b32', 'v15', 1, 'v11')
    a.valu('v_lshlrev_b32', 'v15', 10, 'v15')
    a.valu('v_lshl_add_u32', 'v15', 'v10', 5, 'v15')
    a.valu('v_and_b32', 'v13', 1, 'v11')
    a.valu('v_lshl_add_u32', 'v15', 'v13', 4, 'v15')
    a.valu('v_add_u32', 'v15', 's12', 'v15')
    for t in range(2):
        b = T + 64 + t * 16
        read_acc(a, b, acc(4 + t, 0))
        read_acc(a, b + 4, acc(4 + t, 1))
        for i in range(4):
            a.valu('v_cvt_pk_bf16_f32', V(b + 8 + i), V(b + 2 * i), V(b + 2 * i + 1))
        a.permlane('v_permlane32_swap_b32', V(b + 8), V(b + 10))
        a.permlane('v_permlane32_swap_b32', V(b + 9), V(b + 11))
        a.buf_store('buffer_store_dwordx4', V(b + 8, 4), 'v15', S(68, 4), off=t * 512)


def make_ep_resid(res_ptr, res_off, gate_idx, dst_ptr, dst_off):
    GV, RV, SO = 128, 136, 144

    def pre(a, g, TM, SM, SN, SWM, SWN):
        ep_lane_consts(a)
        a.salu('s_lshl_b32', 's9', SN, 6)
        a.salu('s_lshl_b32', 's10', SWN, 5)
        a.salu('s_add_u32', 's9', 's9', 's10')
        a.salu('s_lshl_b32', 's10', SM, 7)
        a.salu('s_lshl_b32', 's11', SWM, 5)
        a.salu('s_add_u32', 's10', 's10', 's11')
        srd(a, 60, res_ptr, res_off, 4 * MB)
        srd(a, 64, dst_ptr, dst_off, 4 * MB)
        srd(a, 68, P_WS, WS_MOD, 6144 * 4)
        a.valu('v_add_u32', 'v14', 's10', 'v10')
        a.valu('v_lshlrev_b32', 'v14', 11, 'v14')
        a.salu('s_lshl_b32', 's11', 's9', 1)
        a.valu('v_add_u32', 'v14', 's11', 'v14')
        a.valu('v_lshl_add_u32', 'v15', 'v11', 3, 'v14')
        a.valu('v_add_u32', V(SO), 'v14', 'v12')
        a.salu('s_lshl_b32', 's11', 's9', 2)
        a.salu('s_add_u32', 's11', 's11', gate_idx * 4096)
        a.valu('v_lshlrev_b32', 'v13', 4, 'v11')
        a.buf_load('buffer_load_dwordx4', V(GV, 4), 'v13', S(68, 4), 's11')
        a.buf_load('buffer_load_dwordx4', V(GV + 4, 4), 'v13', S(68, 4), 's11', off=64)
        for tm in range(TM):
            a.salu('s_mov_b32', 's9', tm * 32768)
            for t in range(2):
                a.buf_load('buffer_load_dwordx2', V(RV + tm * 4 + t * 2, 2), 'v15', S(60, 4), 's9', off=t * 32)
        return 2 + 2 * TM

    def ep(a, g, acc, TM, SM, SN, SWM, SWN):
        T = 64
        a.waitcnt(vm=0)
        for tm in range(TM):
            b = T + tm * 24
            read_acc(a, b, acc(0, tm))
            read_acc(a, b + 4, acc(1, tm))
            for i in range(8):
                bf16_round(a, V(b + i), V(b + i))
                a.valu('v_mul_f32', V(b + i), V(b + i), V(GV + i))
                bf16_round(a, V(b + i), V(b + i))
            for i in range(4):
                r = V(RV + tm * 4 + i)
                a.valu('v_lshlrev_b32', V(b + 12 + 2 * i), 16, r)
                a.valu('v_and_b32', V(b + 13 + 2 * i), '0xffff0000', r)
            for i in range(8):
                a.valu('v_add_f32', V(b + i), V(b + i), V(b + 12 + i))
            for i in range(4):
                a.valu('v_cvt_pk_bf16_f32', V(b + 8 + i), V(b + 2 * i), V(b + 2 * i + 1))
            a.permlane('v_permlane16_swap_b32', V(b + 8), V(b + 10))
            a.permlane('v_permlane16_swap_b32', V(b + 9), V(b + 11))
            a.salu('s_mov_b32', 's12', tm * 32768)
            a.buf_store('buffer_store_dwordx4', V(b + 8, 4), V(SO), S(64, 4), 's12')
    ep.pre = pre
    return ep


def ep_gateup(a, g, acc, TM, SM, SN, SWM, SWN):
    ep_lane_consts(a)
    a.salu('s_mul_i32', 's9', SN, 224)
    a.salu('s_mul_i32', 's10', SWN, 112)
    a.salu('s_add_u32', 's9', 's9', 's10')
    a.salu('s_lshl_b32', 's10', SM, 7)
    a.salu('s_lshl_b32', 's11', SWM, 5)
    a.salu('s_add_u32', 's10', 's10', 's11')
    srd(a, 60, P_WS, WS_HH, 2048 * 7168)
    a.valu('v_add_u32', 'v14', 's10', 'v10')
    a.salu('s_mov_b32', 's11', 7168)
    a.valu('v_mul_lo_u32', 'v14', 'v14', 's11')
    a.salu('s_lshl_b32', 's11', 's9', 1)
    a.valu('v_add_u32', 'v14', 's11', 'v14')
    a.valu('v_lshl_add_u32', 'v15', 'v11', 3, 'v14')
    a.valu('v_add_u32', 'v16', 'v14', 'v12')
    T = 32
    n = 0
    for tm in range(TM):
        a.salu('s_mov_b32', 's12', tm * 16 * 7168)
        for pr in range(4):
            b = T + (n % 4) * 24
            n += 1
            nt = 2 if pr < 3 else 1
            for q in range(nt):
                t = 2 * pr + q
                read_acc(a, b + 4 * q, acc(t, tm))
                read_acc(a, b + 12 + 4 * q, acc(7 + t, tm))
            for i in range(4 * nt):
                bf16_round(a, V(b + i), V(b + i))
                bf16_round(a, V(b + 12 + i), V(b + 12 + i))
                a.valu('v_mul_f32', V(b + i), V(b + i), V(b + 12 + i))
            for i in range(2 * nt):
                a.valu('v_cvt_pk_bf16_f32', V(b + 8 + i), V(b + 2 * i), V(b + 2 * i + 1))
            if nt == 2:
                a.permlane('v_permlane16_swap_b32', V(b + 8), V(b + 10))
                a.permlane('v_permlane16_swap_b32', V(b + 9), V(b + 11))
                a.buf_store('buffer_store_dwordx4', V(b + 8, 4), 'v16', S(60, 4), 's12', off=pr * 64)
            else:
                a.buf_store('buffer_store_dwordx2', V(b + 8, 2), 'v15', S(60, 4), 's12', off=pr * 64)


PFD = int(os.environ.get('PFD', '4'))


def gemm_qkv():
    g = Gemm()
    g.label = 'qkv_kernel'
    g.K = 1024
    g.lda = 2048
    g.ldw = 6144
    g.x_ptr, g.x_off = P_WS, WS_H1
    g.nbuf = 4
    g.wbytes = 3 * 8192
    tot = 1024 * 6144
    g.wsrd = [(P_WQKV, 128, seg * 2048, tot) for seg in range(3)]
    g.npw = 3
    g.wdma = [(seg, 0, seg * 8192) for seg in range(3)]
    g.tiles = [(t, seg * 8192) for seg in range(3) for t in range(2)]
    g.groups = [[0, 1, 2], [3, 4, 5]]
    g.kstep, g.hstep, g.nsel = 4096, 512, 2
    g.swapped = [False, False, False, False, True, True]
    g.wdma_setup, g.wread_setup = wdma_setup_128, wread_setup_128
    g.touch_setup = make_touch_setup(24, [(P_WQKV, tot, 1024, 3)])
    g.pfd = PFD + 2
    g.epilogue = ep_qkv
    g.stage_unit = True
    return g


def gemm_small(label, K, x_off, wptr, ep):
    g = Gemm()
    g.label = label
    g.K = K
    g.lda = 2 * K
    g.ldw = 2048
    g.x_ptr, g.x_off = P_WS, x_off
    g.nbuf = 4
    g.wbytes = 8192
    g.wsrd = [(wptr, 128, 0, K * 2048)]
    g.npw = 1
    g.wdma = [(0, 0, 0)]
    g.tiles = [(0, 0), (1, 0)]
    g.groups = [[0, 1]]
    g.kstep, g.hstep, g.nsel = 4096, 512, 2
    g.swapped = [False, False]
    g.wdma_setup, g.wread_setup = wdma_setup_128, wread_setup_128
    g.touch_setup = make_touch_setup(8, [(wptr, K * 2048, 1024, 1)])
    g.pfd = PFD + 4
    g.epilogue = ep
    g.stage_unit = True
    return g


def gemm_wo():
    return gemm_small('wo_kernel', 1024, WS_O, P_WO, make_ep_resid(P_X, 0, 2, P_WS, WS_X1))


def gemm_down():
    return gemm_small('down_kernel', 3584, WS_HH, P_WD, make_ep_resid(P_WS, WS_X1, 5, P_OUT, 0))


def gemm_gateup():
    g = Gemm()
    g.label = 'gateup_kernel'
    g.K = 1024
    g.bk = 32
    g.lda = 2048
    g.ldw = 7168
    g.x_ptr, g.x_off = P_WS, WS_H2
    g.nbuf = 4
    g.wbytes = 2 * 14336
    tot = 1024 * 7168
    g.wsrd = [(P_WG, 448, 0, tot), (P_WU, 448, 0, tot)]
    g.npw = 4
    g.wdma = [(0, j, j * 4096) for j in range(3)] + [(0, 3, 's79')]
    g.tiles = [(tt & 1, m * 14336 + tt * 32) for m in range(2) for tt in range(7)]
    g.groups = [list(range(7)), list(range(7, 14))]
    g.kstep, g.hstep, g.nsel = 32 * 448, 4 * 448, 2
    g.swapped = [False] * 14
    g.wdma_setup, g.wread_setup = wdma_setup_448b, wread_setup_448
    g.epilogue = ep_gateup
    return g


def k_attn(a):
    label = 'attn_kernel'
    NWG = 256
    begin_kernel(a, label, NWG)
    a.salu('s_and_b32', 's3', 's2', 7)
    a.salu('s_lshl_b32', 's3', 's3', 2)
    a.salu('s_bfe_u32', 's4', 's2', '0x20003')
    a.salu('s_add_u32', 's3', 's3', 's4')
    a.salu('s_lshr_b32', 's4', 's2', 5)
    a.valu('v_lshrrev_b32', 'v1', 6, 'v0')
    a.readlane('v_readfirstlane_b32', 's6', 'v1')
    a.valu('v_and_b32', 'v2', 63, 'v0')
    a.valu('v_and_b32', 'v3', 31, 'v2')
    a.valu('v_lshrrev_b32', 'v4', 5, 'v2')
    a.waitcnt(lgkm=0)
    stamp(a, 'v217')
    a.salu('s_lshl_b32', 's7', 's3', 17)
    a.salu('s_add_u32', 's8', 's7', WS_Q)
    srd(a, 40, P_WS, 's8', 131072)
    a.salu('s_add_u32', 's8', 's7', WS_K)
    srd(a, 44, P_WS, 's8', 131072)
    a.salu('s_add_u32', 's8', 's7', WS_VT)
    srd(a, 48, P_WS, 's8', 131072)
    srd(a, 52, P_WS, WS_O, 4 * MB)
    a.salu('s_lshl_b32', 's8', 's4', 8)
    a.salu('s_lshl_b32', 's9', 's6', 5)
    a.salu('s_add_u32', 's8', 's8', 's9')
    a.valu('v_add_u32', 'v5', 's8', 'v3')
    a.valu('v_lshlrev_b32', 'v6', 6, 'v5')
    a.valu('v_lshl_add_u32', 'v6', 'v4', 4, 'v6')
    QF = 16
    a.buf_load('buffer_load_dwordx4', V(QF, 4), 'v6', S(40, 4))
    a.buf_load('buffer_load_dwordx4', V(QF + 4, 4), 'v6', S(40, 4), off=32)
    a.valu('v_lshrrev_b32', 'v7', 4, 'v2')
    a.valu('v_and_b32', 'v8', 3, 'v2')
    a.valu('v_xor_b32', 'v7', 'v7', 'v8')
    a.valu('v_lshrrev_b32', 'v8', 2, 'v2')
    a.valu('v_lshlrev_b32', 'v8', 6, 'v8')
    a.valu('v_lshl_add_u32', 'v8', 'v7', 4, 'v8')
    a.salu('s_lshl_b32', 's9', 's6', 10)
    a.valu('v_add_u32', 'v8', 's9', 'v8')
    a.valu('v_add_u32', 'v9', 8192, 'v8')
    a.valu('v_lshrrev_b32', 'v10', 4, 'v2')
    a.valu('v_xor_b32', 'v10', 'v10', 'v2')
    a.valu('v_and_b32', 'v10', 1, 'v10')
    a.valu('v_lshrrev_b32', 'v11', 1, 'v2')
    a.valu('v_lshlrev_b32', 'v11', 5, 'v11')
    a.valu('v_lshl_add_u32', 'v10', 'v10', 4, 'v11')
    a.valu('v_add_u32', 'v10', 's9', 'v10')
    a.valu('v_add_u32', 'v11', 8192, 'v10')
    a.valu('v_bfe_u32', 'v12', 'v3', 2, 2)
    a.valu('v_xor_b32', 'v12', 'v12', 'v4')
    a.valu('v_lshlrev_b32', 'v13', 6, 'v3')
    a.valu('v_lshl_add_u32', 'v12', 'v12', 4, 'v13')
    a.valu('v_xor_b32', 'v13', 32, 'v12')
    a.valu('v_bfe_u32', 'v14', 'v3', 3, 1)
    a.valu('v_xor_b32', 'v14', 'v14', 'v4')
    a.valu('v_lshlrev_b32', 'v15', 5, 'v3')
    a.valu('v_lshl_add_u32', 'v14', 'v14', 4, 'v15')
    a.valu('v_add_u32', 'v14', 16384, 'v14')
    KR0, KR1, VR = 'v12', 'v13', 'v14'
    a.valu('v_add_u32', 'v197', 65536, 'v12')
    a.valu('v_add_u32', 'v198', 65536, 'v13')
    a.valu('v_add_u32', 'v199', 65536, 'v14')
    SKOFF = 's10'
    a.salu('s_mov_b32', SKOFF, 0)
    STHR, SFLOOR = 's11', 's12'
    a.salu('s_mov_b32', STHR, '0xff800000')
    a.salu('s_mov_b32', SFLOOR, '0xff800000')

    def dma_stage(buf):
        out = []
        for i, vo in enumerate(('v8', 'v9')):
            def f(i=i, vo=vo):
                a.salu('s_add_u32', 'm0', 's9', buf * 32768 + i * 8192)
                a.dma(vo, S(44, 4), SKOFF)
            out.append(f)
        for i, vo in enumerate(('v10', 'v11')):
            def f(i=i, vo=vo):
                a.salu('s_add_u32', 'm0', 's9', buf * 32768 + 16384 + i * 8192)
                a.dma(vo, S(48, 4), SKOFF)
            out.append(f)
        out.append(lambda: a.salu('s_add_u32', SKOFF, SKOFF, 16384))
        return out

    KF = 24
    VF = 40
    ONE = 56
    PB = 60
    OA = 76
    LA = 92
    CM = 108
    SS = 124
    TMP = 188
    PB2 = 200
    FV = 216
    SFLAG = 's14'
    a.salu('s_mov_b32', SFLAG, 0)
    for i in range(4):
        a.valu('v_mov_b32', V(ONE + i), '0x3f803f80')
    for i in range(16):
        a.valu('v_mov_b32', V(OA + i), 0)
        a.valu('v_mov_b32', V(LA + i), 0)
        a.valu('v_mov_b32', V(CM + i), 0)

    def k_reads(buf, it):
        out = []
        for kt in range(2):
            for st in range(2):
                out.append(lambda kt=kt, st=st: a.ds_read('ds_read_b128', V(KF + kt * 8 + st * 4, 4),
                                                          ((KR0, KR1), (KR0, KR1), ('v197', 'v198'))[buf][st],
                                                          (buf % 2) * 32768 + (it * 2 + kt) * 2048))
        return out

    def v_reads(buf, it):
        return [lambda u=u: a.ds_read('ds_read_b128', V(VF + u * 4, 4), (VR, VR, 'v199')[buf], (buf % 2) * 32768 + (it * 4 + u) * 1024)
                for u in range(4)]

    def s_mfmas(ss):
        out = []
        for kt in range(2):
            d = V(SS + ss * 32 + kt * 16, 16)
            out.append(lambda kt=kt, d=d: a.mfma('32x32x16', d, V(KF + kt * 8, 4), V(QF, 4), V(CM, 16)))
            out.append(lambda kt=kt, d=d: a.mfma('32x32x16', d, V(KF + kt * 8 + 4, 4), V(QF + 4, 4), d))
        return out

    if 'aprio' in os.environ.get('OPT', ''):
        a.salu('s_cmp_ge_u32', 's6', 4, nodst=True)
        a.branch('s_cbranch_scc0', 'attn_prio')
        a.other('s_setprio 1')
        a.label('attn_prio')
    a.salu('s_lshl_b32', 's78', 's2', 3)
    a.salu('s_add_u32', 's78', 's78', 's6')
    for mi, (ptr, nbytes, n) in enumerate([(P_WO, 1024 * 2048, 8), (P_WG, 1024 * 7168, 28), (P_WU, 1024 * 7168, 28), (P_WD, 3584 * 2048, 28)]):
        srd(a, 56 + 4 * mi, ptr, 0, nbytes)
        a.salu('s_mul_i32', 's77', 's78', n * 128)
        a.valu('v_lshlrev_b32', V(TMP + 4 + mi), 7, 'v2')
        a.valu('v_add_u32', V(TMP + 4 + mi), 's77', V(TMP + 4 + mi))
        a.valu('v_cmp_gt_u32', 'vcc', n, 'v2')
        a.valu('v_mov_b32', V(TMP + 8), '0x7f000000')
        a.valu('v_cndmask_b32', V(TMP + 4 + mi), V(TMP + 8), V(TMP + 4 + mi))
    for f in dma_stage(0):
        f()
    for f in dma_stage(1):
        f()
    a.waitcnt(vm=4)
    a.barrier()
    for f in k_reads(0, 0):
        f()
    a.waitcnt(lgkm=0)
    for f in s_mfmas(0):
        f()
    for f in k_reads(0, 1):
        f()
    for f in v_reads(0, 0):
        f()

    rare_id = [0]

    def pv_mfmas(pb):
        pv = []
        for u in range(4):
            pv.append(lambda u=u: a.mfma('32x32x16', V(OA, 16), V(VF + u * 4, 4), V(pb + u * 4, 4), V(OA, 16)))
            pv.append(lambda u=u: a.mfma('32x32x16', V(LA, 16), V(ONE, 4), V(pb + u * 4, 4), V(LA, 16)))
        return pv

    def pos(st, it, d):
        j = it + d
        return ((st + j // 4) % 3, j % 4)

    def iteration(st, it, ss, gidx, first=False):
        sb = SS + ss * 32
        pb_cur = (PB, PB2)[ss]
        pb_prev = (PB, PB2)[ss ^ 1]
        NIT = 32
        last = gidx is not None and gidx == NIT - 1
        has_next = not last
        has_next2 = gidx is None or gidx + 2 <= NIT - 1
        if it == 2 and (gidx is None or gidx + 2 <= NIT - 1):
            a.waitcnt(vm=0)
            a.barrier()
            if gidx is None or gidx // 4 + 2 <= 7:
                for f in dma_stage((st + 2) % 3):
                    f()
                if 'notouch' not in os.environ.get('ABL', '') and gidx is None:
                    lb = 'attn_nt%d' % st
                    a.salu('s_cmp_lg_u32', 's13', 2, nodst=True)
                    a.branch('s_cbranch_scc1', lb)
                    a.buf_load('buffer_load_dword', V(TMP + 8), V(TMP + 4 + st), S(56 + 4 * st, 4))
                    if st == 2:
                        a.buf_load('buffer_load_dword', V(TMP + 8), V(TMP + 4 + 3), S(56 + 12, 4))
                    a.label(lb)
        mx = []
        mx.append(lambda: a.valu('v_max3_f32', V(TMP), V(sb), V(sb + 1), V(sb + 2)))
        mx.append(lambda: a.valu('v_max3_f32', V(TMP + 1), V(sb + 3), V(sb + 4), V(sb + 5)))
        k = 6
        while k < 32:
            mx.append(lambda k=k: a.valu('v_max3_f32', V(TMP), V(TMP), V(sb + k), V(sb + k + 1)))
            if k + 3 < 32:
                mx.append(lambda k=k: a.valu('v_max3_f32', V(TMP + 1), V(TMP + 1), V(sb + k + 2), V(sb + k + 3)))
            k += 4
        mx.append(lambda: a.valu('v_max_f32', V(TMP), V(TMP), V(TMP + 1)))
        mx.append(lambda: a.valu('v_cmp_lt_f32', 'vcc', STHR, V(TMP)))
        pv = [] if first else pv_mfmas(pb_prev)
        if first:
            for f in mx:
                f()
        else:
            a.waitcnt(lgkm=4)
            interleave(a, pv[:3], mx)
        rid = rare_id[0]
        rare_id[0] += 1
        a.branch('s_cbranch_vccnz', 'attn_rare%d' % rid)
        a.label('attn_back%d' % rid)
        rare_blocks.append((rid, sb))
        ex = []
        for i in range(32):
            ex.append(lambda i=i: a.valu('v_exp_f32', V(sb + i), V(sb + i)))
            if i % 2 == 0 and i >= 2:
                ex.append(lambda i=i: a.valu('v_cvt_pk_bf16_f32', V(pb_cur + i // 2 - 1), V(sb + i - 2), V(sb + i - 1)))
        ex.append(lambda: a.valu('v_cvt_pk_bf16_f32', V(pb_cur + 15), V(sb + 30), V(sb + 31)))
        mf = pv[3:]
        nrest = len(mf)
        if has_next:
            a.waitcnt(lgkm=0)
            mf = mf + s_mfmas(ss ^ 1)
        b0, i0 = pos(st, it, 0)
        vr = [] if first else v_reads(b0, i0)
        kr = []
        if has_next and has_next2:
            b2, i2 = pos(st, it, 2)
            kr = k_reads(b2, i2)
        n = len(mf)
        j = 0
        for i, m in enumerate(mf):
            m()
            if i == nrest - 1:
                for f in vr:
                    f()
            tgt = (i + 1) * len(ex) // n
            while j < tgt:
                ex[j]()
                j += 1
        while j < len(ex):
            ex[j]()
            j += 1
        for f in kr:
            f()
        if not first:
            a.salu('s_cmp_eq_u32', SFLAG, 0, nodst=True)
            a.branch('s_cbranch_scc0', 'attn_fix%d' % rid)
            a.label('attn_fixb%d' % rid)
            fix_blocks.append(rid)
        else:
            a.salu('s_mov_b32', SFLAG, 0)
        if last:
            a.waitcnt(lgkm=0)
            for f in pv_mfmas(pb_cur):
                f()

    fix_blocks = []
    rare_blocks = []
    a.abl = ABL if ABL.startswith('A') else ''
    stamp(a, 'v217')
    iteration(0, 0, 0, 0, first=True)
    stamp(a, 'v217')
    a.salu('s_mov_b32', 's13', 2)
    a.label('attn_loop')
    a.loop_guard()
    for j in range(1, 13):
        iteration((j // 4) % 3, j % 4, j & 1, None)
    a.salu('s_sub_u32', 's13', 's13', 1)
    a.salu('s_cmp_lg_u32', 's13', 0, nodst=True)
    a.branch('s_cbranch_scc1', 'attn_loop')
    a.loop_guard()
    for j in range(25, 32):
        stamp(a, 'v217')
        iteration((j // 4) % 3, j % 4, j & 1, j)
    stamp(a, 'v217')
    a.abl = ''
    a.nop(16)
    a.valu('v_rcp_f32', V(TMP), V(LA))
    for i in range(16):
        a.valu('v_mul_f32', V(OA + i), V(OA + i), V(TMP))
    for i in range(8):
        a.valu('v_cvt_pk_bf16_f32', V(PB + i), V(OA + 2 * i), V(OA + 2 * i + 1))
    a.valu('v_lshlrev_b32', 'v6', 11, 'v5')
    a.salu('s_lshl_b32', 's8', 's3', 6)
    a.valu('v_add_u32', 'v6', 's8', 'v6')
    a.valu('v_lshl_add_u32', 'v6', 'v4', 4, 'v6')
    for pr in range(2):
        b = PB + 4 * pr
        a.permlane('v_permlane32_swap_b32', V(b), V(b + 2))
        a.permlane('v_permlane32_swap_b32', V(b + 1), V(b + 3))
        a.buf_store('buffer_store_dwordx4', V(b, 4), 'v6', S(52, 4), off=pr * 32)
    stamp(a, 'v217')
    a.waitcnt(vm=0)
    stamp(a, 'v217')
    stamp_dump(a, 0, 'v217')
    a.other('s_endpgm')
    for rid, sb in rare_blocks:
        a.label('attn_rare%d' % rid)
        a.reset_hist()
        a.nop(16)
        a.valu('v_mov_b32', V(TMP + 1), V(TMP))
        a.valu('v_mov_b32', V(TMP + 2), V(TMP))
        a.permlane('v_permlane32_swap_b32', V(TMP + 1), V(TMP + 2))
        a.valu('v_max_f32', V(TMP), V(TMP + 1), V(TMP + 2))
        a.valu('v_max_f32', V(TMP), SFLOOR, V(TMP))
        a.valu('v_sub_f32', V(TMP + 1), 0, V(TMP))
        a.valu('v_exp_f32', V(FV), V(TMP + 1))
        for i in range(16):
            a.valu('v_sub_f32', V(CM + i), V(CM + i), V(TMP))
        for i in range(32):
            a.valu('v_sub_f32', V(sb + i), V(sb + i), V(TMP))
        a.salu('s_mov_b32', SFLAG, 1)
        a.salu('s_mov_b32', STHR, hexf(48.0))
        a.salu('s_mov_b32', SFLOOR, 0)
        a.nop(4)
        a.branch('s_branch', 'attn_back%d' % rid)
    for rid in fix_blocks:
        a.label('attn_fix%d' % rid)
        a.reset_hist()
        a.nop(16)
        for i in range(16):
            a.valu('v_mul_f32', V(OA + i), V(OA + i), V(FV))
            a.valu('v_mul_f32', V(LA + i), V(LA + i), V(FV))
        a.salu('s_mov_b32', SFLAG, 0)
        a.nop(4)
        a.branch('s_branch', 'attn_fixb%d' % rid)
    end_kernel(a, label)
    KERNELS.append((label, (NWG, 1, 1), (512, 1, 1), 98304, 220, 220, 96))


def build(only=None):
    a = Asm()
    k_mod(a)
    k_ln(a, 'ln1_kernel', P_X, 0, WS_H1, 0, 1, touch=[(P_WQKV, 1024 * 6144, 24)])
    k_gemm(a, gemm_qkv())
    k_attn(a)
    k_gemm(a, gemm_wo())
    k_ln(a, 'ln2_kernel', P_WS, WS_X1, WS_H2, 3, 4, tiled=True)
    k_gemm(a, gemm_gateup())
    k_gemm(a, gemm_down())
    hdr = []
    ref = open('cdna_kernels/%s.s.ref' % NAME).read().splitlines()
    for ln in ref:
        if ln.startswith(';') and '@launch' not in ln and 'launch geometry' not in ln and 'grid=ceil' not in ln:
            hdr.append(ln)
    for (label, grid, block, lds, nv, ao, ns) in KERNELS:
        if only is not None and label not in only:
            continue
        hdr.append('; @launch kernel=%s grid=(%d,%d,%d) block=(%d,%d,%d) lds=%d' % ((label,) + grid + block + (lds,)))
    out = '\n'.join(hdr) + '\n'
    out += '.amdgcn_target "amdgcn-amd-amdhsa--gfx950"\n.text\n'
    out += a.text()
    out += '.section .rodata,"a"\n'
    for (label, grid, block, lds, nv, ao, ns) in KERNELS:
        out += '.p2align 6\n.amdhsa_kernel %s\n' % label
        out += '  .amdhsa_next_free_vgpr %d\n' % nv
        out += '  .amdhsa_next_free_sgpr %d\n' % ns
        out += '  .amdhsa_accum_offset %d\n' % ao
        out += '  .amdhsa_group_segment_fixed_size 0\n'
        out += '  .amdhsa_kernarg_size 96\n'
        out += '  .amdhsa_user_sgpr_count 2\n'
        out += '  .amdhsa_user_sgpr_kernarg_segment_ptr 1\n'
        out += '  .amdhsa_system_sgpr_workgroup_id_x 1\n'
        out += '  .amdhsa_float_denorm_mode_32 3\n'
        out += '  .amdhsa_float_denorm_mode_16_64 3\n'
        out += '.end_amdhsa_kernel\n'
    return out


if __name__ == '__main__':
    dst = sys.argv[1] if len(sys.argv) > 1 else 'cdna_kernels/%s.s' % NAME
    open(dst, 'w').write(build())
    print('wrote', dst)
```

```python
import math
import struct
import sys
import os

sys.path.insert(0, os.path.dirname(os.path.abspath(__file__)))
from asmlib import Asm, V, A, S

NAME = 'adaLN_cond__mha_block__glu_gated_bilinear__prompt'

MB = 1 << 20
WS_MOD = 0
WS_H1 = 1 * MB
WS_Q = 8 * MB
WS_K = 12 * MB
WS_VT = 16 * MB
WS_O = 20 * MB
WS_X1 = 24 * MB
WS_H2 = 28 * MB
WS_HH = 32 * MB

P_X, P_WQKV, P_WO, P_BX, P_WG, P_WU, P_WD, P_C, P_WMOD, P_OUT, P_DBG, P_WS = [16 + 2 * i for i in range(12)]


def f32bits(x):
    return struct.unpack('<I', struct.pack('<f', x))[0]


def hexf(x):
    return '0x%08x' % f32bits(x)


KERNELS = []


def begin_kernel(a, label, nwg):
    a.raw('.p2align 8')
    a.raw('.globl %s' % label)
    a.raw('.type %s,@function' % label)
    a.raw(label + ':')
    a.reset_hist()
    a.salu('s_cmp_ge_u32', 's2', nwg, nodst=True)
    a.branch('s_cbranch_scc1', label + '_end')
    a.smem('s_load_dwordx16', S(16, 16), S(0, 2), 0)
    a.smem('s_load_dwordx8', S(32, 8), S(0, 2), 64)


def end_kernel(a, label):
    a.label(label + '_end')
    a.other('s_endpgm')


def srd(a, d, ptr, off, nbytes):
    a.salu('s_add_u32', S(d), S(ptr), off)
    a.salu('s_addc_u32', S(d + 1), S(ptr + 1), 0)
    a.salu('s_and_b32', S(d + 1), S(d + 1), '0xffff')
    a.salu('s_mov_b32', S(d + 2), nbytes)
    a.salu('s_mov_b32', S(d + 3), '0x00020000')


def bf16_round(a, dst, src):
    a.valu('v_cvt_pk_bf16_f32', dst, src, src)
    a.valu('v_and_b32', dst, '0xffff0000', dst)


def touch_weights(a, gw_vreg, lane_vreg, mats, srd0, tmp0):
    for i, (ptr, nbytes, n) in enumerate(mats):
        d = srd0 + 4 * i
        srd(a, d, ptr, 0, nbytes)
        a.salu('s_mul_i32', 's77', gw_vreg, n * 128)
        a.valu('v_lshlrev_b32', V(tmp0), 7, lane_vreg)
        a.valu('v_add_u32', V(tmp0), 's77', V(tmp0))
        a.valu('v_cmp_gt_u32', 'vcc', n, lane_vreg)
        a.valu('v_mov_b32', V(tmp0 + 1), '0x7f000000')
        a.valu('v_cndmask_b32', V(tmp0), V(tmp0 + 1), V(tmp0))
        a.buf_load('buffer_load_dword', V(tmp0 + 2), V(tmp0), S(d, 4))


def k_mod(a):
    label = 'mod_kernel'
    NWG = 192
    begin_kernel(a, label, NWG)
    a.salu('s_and_b32', 's3', 's2', 7)
    a.salu('s_mul_i32', 's3', 's3', 24)
    a.salu('s_lshr_b32', 's4', 's2', 3)
    a.salu('s_add_u32', 's3', 's3', 's4')
    a.waitcnt(lgkm=0)
    srd(a, 40, P_C, 0, 2048)
    srd(a, 44, P_WMOD, 0, 1024 * 12288)
    srd(a, 48, P_WS, WS_MOD, 6144 * 4)
    a.valu('v_lshlrev_b32', 'v1', 3, 'v0')
    a.buf_load('buffer_load_dwordx2', V(2, 2), 'v1', S(40, 4))
    a.valu('v_lshrrev_b32', 'v4', 2, 'v0')
    a.valu('v_and_b32', 'v5', 3, 'v0')
    a.salu('s_mov_b32', 's5', 12288)
    a.valu('v_mul_lo_u32', 'v6', 'v4', 's5')
    a.valu('v_lshlrev_b32', 'v7', 4, 'v5')
    a.valu('v_add_u32', 'v6', 'v6', 'v7')
    a.salu('s_lshl_b32', 's6', 's3', 6)
    for p in range(16):
        a.salu('s_add_u32', 's7', 's6', p * 64 * 12288)
        a.buf_load('buffer_load_dwordx4', V(64 + 4 * p, 4), 'v6', S(44, 4), 's7')
    a.waitcnt(vm=16)
    a.valu('v_lshlrev_b32', 'v8', 16, 'v2')
    a.valu('v_and_b32', 'v9', '0xffff0000', 'v2')
    a.valu('v_lshlrev_b32', 'v10', 16, 'v3')
    a.valu('v_and_b32', 'v11', '0xffff0000', 'v3')
    a.salu('s_mov_b32', 's8', hexf(-1.4426950408889634))
    for i in range(4):
        a.valu('v_mul_f32', V(12 + i), 's8', V(8 + i))
    for i in range(4):
        a.valu('v_exp_f32', V(12 + i), V(12 + i))
    for i in range(4):
        a.valu('v_add_f32', V(12 + i), '1.0', V(12 + i))
    for i in range(4):
        a.valu('v_rcp_f32', V(12 + i), V(12 + i))
    for i in range(4):
        a.valu('v_mul_f32', V(12 + i), V(8 + i), V(12 + i))
    for i in range(4):
        bf16_round(a, V(12 + i), V(12 + i))
    a.valu('v_lshlrev_b32', 'v16', 4, 'v0')
    a.ds_write('ds_write_b128', 'v16', V(12, 4))
    a.waitcnt(lgkm=0)
    a.barrier()
    a.valu('v_lshlrev_b32', 'v17', 2, 'v4')
    for p in range(16):
        a.ds_read('ds_read_b32', V(24 + p), 'v17', p * 256)
    for j in range(8):
        a.valu('v_mov_b32', V(40 + j), 0)
    a.waitcnt(vm=0, lgkm=0)
    for p in range(16):
        for d in range(4):
            src = V(64 + 4 * p + d)
            a.valu('v_lshlrev_b32', 'v48', 16, src)
            a.valu('v_and_b32', 'v49', '0xffff0000', src)
            a.valu('v_fmac_f32', V(40 + 2 * d), V(24 + p), 'v48')
            a.valu('v_fmac_f32', V(41 + 2 * d), V(24 + p), 'v49')
    a.valu('v_lshlrev_b32', 'v18', 5, 'v0')
    a.ds_write('ds_write_b128', 'v18', V(40, 4), 4096)
    a.ds_write('ds_write_b128', 'v18', V(44, 4), 4096 + 16)
    a.waitcnt(lgkm=0)
    a.barrier()
    a.valu('v_and_b32', 'v19', 31, 'v0')
    a.valu('v_lshrrev_b32', 'v20', 5, 'v0')
    a.valu('v_lshlrev_b32', 'v21', 10, 'v20')
    a.valu('v_lshl_add_u32', 'v21', 'v19', 2, 'v21')
    for i in range(8):
        a.ds_read('ds_read_b32', V(24 + i), 'v21', 4096 + i * 128)
    a.waitcnt(lgkm=0)
    for i in range(1, 8):
        a.valu('v_add_f32', 'v24', 'v24', V(24 + i))
    a.valu('v_lshlrev_b32', 'v22', 2, 'v0')
    a.ds_write('ds_write_b32', 'v22', 'v24', 12288)
    a.waitcnt(lgkm=0)
    a.barrier()
    a.valu('v_lshlrev_b32', 'v22', 2, 'v19')
    for i in range(8):
        a.ds_read('ds_read_b32', V(24 + i), 'v22', 12288 + i * 128)
    a.waitcnt(lgkm=0)
    for i in range(1, 8):
        a.valu('v_add_f32', 'v24', 'v24', V(24 + i))
    bf16_round(a, 'v24', 'v24')
    a.salu('s_lshr_b32', 's9', 's3', 5)
    a.salu('s_cmp_eq_u32', 's9', 1, nodst=True)
    a.branch('s_cbranch_scc1', 'mod_plus1')
    a.salu('s_cmp_eq_u32', 's9', 4, nodst=True)
    a.branch('s_cbranch_scc0', 'mod_store')
    a.label('mod_plus1')
    a.nop(2)
    a.valu('v_add_f32', 'v24', '1.0', 'v24')
    bf16_round(a, 'v24', 'v24')
    a.label('mod_store')
    a.nop(2)
    a.valu('v_cmp_gt_u32', 'vcc', 32, 'v0')
    a.salu('s_and_saveexec_b64', S(10, 2), 'vcc')
    a.branch('s_cbranch_execz', label + '_end')
    a.salu('s_lshl_b32', 's9', 's3', 7)
    a.valu('v_lshlrev_b32', 'v22', 2, 'v0')
    a.buf_store('buffer_store_dword', 'v24', 'v22', S(48, 4), 's9')
    end_kernel(a, label)
    KERNELS.append((label, (NWG, 1, 1), (256, 1, 1), 16384, 128, 128, 96))


def wave_sum(a, v, tmp, sbase):
    a.valu('v_add_f32', tmp, v, v, mods='quad_perm:[1,0,3,2] row_mask:0xf bank_mask:0xf', dpp=True)
    a.valu('v_add_f32', v, tmp, tmp, mods='quad_perm:[2,3,0,1] row_mask:0xf bank_mask:0xf', dpp=True)
    a.valu('v_add_f32', tmp, v, v, mods='row_half_mirror row_mask:0xf bank_mask:0xf', dpp=True)
    a.valu('v_add_f32', v, tmp, tmp, mods='row_mirror row_mask:0xf bank_mask:0xf', dpp=True)
    for i in range(4):
        a.readlane('v_readlane_b32', S(sbase + i), v, 16 * i)
    a.valu('v_mov_b32', v, S(sbase))
    for i in range(1, 4):
        a.valu('v_add_f32', v, S(sbase + i), v)


def k_ln(a, label, src_ptr, src_off, dst_off, shift_idx, scale_idx, touch=None, tiled=False):
    NWG = 512
    begin_kernel(a, label, NWG)
    a.valu('v_lshrrev_b32', 'v1', 6, 'v0')
    a.valu('v_and_b32', 'v2', 63, 'v0')
    a.salu('s_lshl_b32', 's3', 's2', 2)
    a.valu('v_add_u32', 'v1', 's3', 'v1')
    a.valu('v_lshlrev_b32', 'v3', 11, 'v1')
    a.valu('v_lshl_add_u32', 'v3', 'v2', 4, 'v3')
    a.valu('v_lshlrev_b32', 'v4', 5, 'v2')
    a.waitcnt(lgkm=0)
    srd(a, 40, src_ptr, src_off, 2048 * 2048)
    srd(a, 44, P_WS, dst_off, 2048 * 2048)
    srd(a, 48, P_WS, WS_MOD, 6144 * 4)
    a.buf_load('buffer_load_dwordx4', V(8, 4), 'v3', S(40, 4))
    a.buf_load('buffer_load_dwordx4', V(12, 4), 'v3', S(40, 4), off=1024)
    a.salu('s_mov_b32', 's4', scale_idx * 4096)
    a.salu('s_mov_b32', 's5', shift_idx * 4096)
    for h in range(2):
        for q in range(2):
            a.buf_load('buffer_load_dwordx4', V(64 + 8 * h + 4 * q, 4), 'v4', S(48, 4), 's4', off=h * 2048 + q * 16)
    for h in range(2):
        for q in range(2):
            a.buf_load('buffer_load_dwordx4', V(80 + 8 * h + 4 * q, 4), 'v4', S(48, 4), 's5', off=h * 2048 + q * 16)
    extra = 0
    if touch:
        a.valu('v_lshrrev_b32', 'v40', 6, 'v0')
        a.readlane('v_readfirstlane_b32', 's78', 'v40')
        a.salu('s_lshl_b32', 's79', 's2', 2)
        a.salu('s_add_u32', 's78', 's78', 's79')
        touch_weights(a, 's78', 'v2', touch, 52, 40)
        extra = len(touch)
    a.waitcnt(vm=8 + extra)
    for d in range(8):
        a.valu('v_lshlrev_b32', V(16 + 2 * d), 16, V(8 + d))
        a.valu('v_and_b32', V(17 + 2 * d), '0xffff0000', V(8 + d))
    a.valu('v_add_f32', 'v32', 'v16', 'v17')
    for i in range(2, 16):
        a.valu('v_add_f32', 'v32', 'v32', V(16 + i))
    wave_sum(a, 'v32', 'v33', 8)
    a.valu('v_mul_f32', 'v32', hexf(1.0 / 1024), 'v32')
    a.valu('v_sub_f32', 'v34', 'v16', 'v32')
    a.valu('v_mul_f32', 'v35', 'v34', 'v34')
    for i in range(1, 16):
        a.valu('v_sub_f32', 'v34', V(16 + i), 'v32')
        a.valu('v_fmac_f32', 'v35', 'v34', 'v34')
    wave_sum(a, 'v35', 'v33', 8)
    a.valu('v_mul_f32', 'v35', hexf(1.0 / 1024), 'v35')
    bf16_round(a, 'v32', 'v32')
    bf16_round(a, 'v35', 'v35')
    a.valu('v_add_f32', 'v35', hexf(1e-5), 'v35')
    bf16_round(a, 'v35', 'v35')
    a.valu('v_sqrt_f32', 'v35', 'v35')
    bf16_round(a, 'v35', 'v35')
    a.valu('v_rcp_f32', 'v36', 'v35')
    a.waitcnt(vm=extra)
    for i in range(16):
        x = V(16 + i)
        a.valu('v_sub_f32', x, x, 'v32')
        bf16_round(a, x, x)
        a.valu('v_mul_f32', x, x, 'v36')
        bf16_round(a, x, x)
        a.valu('v_mul_f32', x, x, V(64 + i))
        bf16_round(a, x, x)
        a.valu('v_add_f32', x, x, V(80 + i))
    for d in range(8):
        a.valu('v_cvt_pk_bf16_f32', V(8 + d), V(16 + 2 * d), V(17 + 2 * d))
    if tiled:
        a.valu('v_lshrrev_b32', 'v5', 2, 'v2')
        a.valu('v_lshlrev_b32', 'v5', 17, 'v5')
        a.valu('v_lshl_add_u32', 'v5', 'v1', 6, 'v5')
        a.valu('v_and_b32', 'v6', 3, 'v2')
        a.valu('v_lshl_add_u32', 'v5', 'v6', 4, 'v5')
        a.valu('v_add_u32', 'v6', 16 * 131072, 'v5')
        a.buf_store('buffer_store_dwordx4', V(8, 4), 'v5', S(44, 4))
        a.buf_store('buffer_store_dwordx4', V(12, 4), 'v6', S(44, 4))
    else:
        a.buf_store('buffer_store_dwordx4', V(8, 4), 'v3', S(44, 4))
        a.buf_store('buffer_store_dwordx4', V(12, 4), 'v3', S(44, 4), off=1024)
    end_kernel(a, label)
    KERNELS.append((label, (NWG, 1, 1), (256, 1, 1), 0, 96, 96, 96))


class Gemm:
    pass


STAMP = os.environ.get('STAMP', '')
stamp_n = [0]


def stamp(a, vreg='v31'):
    if not STAMP:
        return
    a.other('s_memtime s[80:81]')
    a.waitcnt(lgkm=0)
    a.valu('v_writelane_b32', vreg, 's80', stamp_n[0])
    stamp_n[0] += 1


def stamp_dump(a, wg, vreg='v31'):
    if not STAMP:
        return
    a.salu('s_cmp_lg_u32', 's2', wg, nodst=True)
    a.branch('s_cbranch_scc1', 'sd%d' % id(stamp_n) + '_%d' % stamp_n[0] + '_%d' % len(a.lines))
    lb = 'sd%d' % id(stamp_n) + '_%d' % stamp_n[0] + '_%d' % (len(a.lines) - 1)
    a.valu('v_lshrrev_b32', 'v30', 6, 'v0')
    a.valu('v_cmp_eq_u32', 'vcc', int(os.environ.get('STAMPWAVE', '0')), 'v30')
    a.salu('s_and_saveexec_b64', S(82, 2), 'vcc')
    a.branch('s_cbranch_execz', lb)
    srd(a, 84, P_DBG, 0, 256)
    a.valu('v_and_b32', 'v30', 63, 'v0')
    a.valu('v_lshlrev_b32', 'v30', 2, 'v30')
    a.buf_store('buffer_store_dword', vreg, 'v30', S(84, 4))
    a.label(lb)
    a.salu('s_mov_b64', 'exec', -1)
    stamp_n[0] = 0


ABL = os.environ.get('ABL', '')


def interleave(a, mf, others, front=0):
    n = len(mf)
    fr = others[:front]
    rest = others[front:]
    per = max(1, -(-len(fr) // n))
    j = 0
    jr = 0
    for i, m in enumerate(mf):
        m()
        for _ in range(per):
            if j < len(fr):
                fr[j]()
                j += 1
        if j >= len(fr) and jr < len(rest):
            left = n - i
            cnt = -(-(len(rest) - jr) // left)
            for _ in range(cnt):
                if jr < len(rest):
                    rest[jr]()
                    jr += 1
    while j < len(fr):
        fr[j]()
        j += 1
    while jr < len(rest):
        rest[jr]()
        jr += 1


def k_gemm(a, g):
    label = g.label
    a.abl = ABL if not ABL.startswith('A') else ''
    NWG = 256
    TM = 2
    NT = len(g.tiles)
    NBUF = g.nbuf
    BK = getattr(g, 'bk', 64)
    NKS = BK // 32
    XB = 128 * BK * 2
    BUFSZ = XB + g.wbytes
    S_ = g.K // BK
    NPX = XB // 8192
    NPW = g.npw
    P = NPX + NPW
    groups = g.groups
    G = len(groups)
    assert S_ % NBUF == 0 and S_ >= 2 * NBUF
    begin_kernel(a, label, NWG)
    a.salu('s_and_b32', 's3', 's2', 3)
    a.salu('s_lshl_b32', 's3', 's3', 2)
    a.salu('s_bfe_u32', 's4', 's2', '0x20003')
    a.salu('s_add_u32', 's3', 's3', 's4')
    a.salu('s_bfe_u32', 's4', 's2', '0x10002')
    a.salu('s_lshl_b32', 's4', 's4', 3)
    a.salu('s_lshr_b32', 's5', 's2', 5)
    a.salu('s_add_u32', 's4', 's4', 's5')
    SM, SN = 's3', 's4'
    a.valu('v_lshrrev_b32', 'v1', 6, 'v0')
    a.readlane('v_readfirstlane_b32', 's6', 'v1')
    a.valu('v_and_b32', 'v2', 63, 'v0')
    SW = 's6'
    a.salu('s_and_b32', 's7', SW, 3)
    a.salu('s_lshr_b32', 's8', SW, 2)
    SWM, SWN = 's7', 's8'
    a.waitcnt(lgkm=0)
    stamp(a)
    a.salu('s_mul_i32', 's9', SM, 128 * (g.lda if BK == 64 else 64))
    a.salu('s_add_u32', 's10', 's9', g.x_off)
    a.salu('s_sub_u32', 's11', 2048 * g.lda, 's9')
    srd(a, 40, g.x_ptr, 's10', 's11')
    for i, (ptr, cpn, cc, tot) in enumerate(g.wsrd):
        a.salu('s_mul_i32', 's9', SN, cpn)
        a.salu('s_add_u32', 's9', 's9', cc)
        a.salu('s_sub_u32', 's11', tot, 's9')
        srd(a, 44 + 4 * i, ptr, 's9', 's11')
    L = 'v2'
    a.valu('v_lshrrev_b32', 'v10', 3, L)
    a.valu('v_lshrrev_b32', 'v11', 4, L)
    a.valu('v_bfe_u32', 'v12', L, 2, 2)
    a.valu('v_and_b32', 'v15', 3, L)
    if BK == 64:
        a.salu('s_and_b32', 's9', SW, 1)
        a.salu('s_lshl_b32', 's9', 's9', 2)
        a.valu('v_add_u32', 'v13', 's9', 'v11')
        a.valu('v_and_b32', 'v14', 7, L)
        a.valu('v_xor_b32', 'v13', 'v13', 'v14')
        a.salu('s_lshl_b32', 's9', SW, 3)
        a.valu('v_add_u32', 'v14', 's9', 'v10')
        a.salu('s_mov_b32', 's9', g.lda)
        a.valu('v_mul_lo_u32', 'v14', 'v14', 's9')
        a.valu('v_lshl_add_u32', 'v4', 'v13', 4, 'v14')
        a.valu('v_add_u32', 'v5', 64 * g.lda, 'v4')
    else:
        a.valu('v_lshrrev_b32', 'v13', 1, 'v11')
        a.valu('v_xor_b32', 'v14', 'v13', 'v11')
        a.valu('v_and_b32', 'v14', 1, 'v14')
        a.valu('v_lshl_add_u32', 'v13', 'v14', 1, 'v13')
        a.valu('v_xor_b32', 'v13', 'v13', 'v15')
        a.valu('v_lshrrev_b32', 'v14', 2, L)
        a.valu('v_lshlrev_b32', 'v14', 6, 'v14')
        a.valu('v_lshl_add_u32', 'v4', 'v13', 4, 'v14')
        a.salu('s_lshl_b32', 's9', SW, 10)
        a.valu('v_add_u32', 'v4', 's9', 'v4')
    WV = 32
    g.wdma_setup(a, g, WV, SW)
    XR = 16
    if BK == 64:
        a.valu('v_and_b32', 'v13', 15, L)
        a.valu('v_lshrrev_b32', 'v14', 1, 'v13')
        a.valu('v_xor_b32', 'v14', 'v14', 'v11')
        a.valu('v_lshlrev_b32', 'v13', 7, 'v13')
        a.valu('v_lshl_add_u32', 'v13', 'v14', 4, 'v13')
        a.salu('s_lshl_b32', 's9', SWM, 12)
        a.valu('v_add_u32', 'v13', 's9', 'v13')
        for b in range(NBUF):
            a.valu('v_add_u32', V(XR + 2 * b), b * BUFSZ, 'v13')
            a.valu('v_xor_b32', V(XR + 2 * b + 1), 64, V(XR + 2 * b))
        XTS = 2048
    else:
        a.valu('v_lshrrev_b32', 'v13', 1, 'v12')
        a.valu('v_xor_b32', 'v14', 'v13', 'v12')
        a.valu('v_and_b32', 'v14', 1, 'v14')
        a.valu('v_lshl_add_u32', 'v13', 'v14', 1, 'v13')
        a.valu('v_xor_b32', 'v14', 'v13', 'v11')
        a.valu('v_and_b32', 'v13', 15, L)
        a.valu('v_lshlrev_b32', 'v13', 6, 'v13')
        a.valu('v_lshl_add_u32', 'v13', 'v14', 4, 'v13')
        a.salu('s_lshl_b32', 's9', SWM, 11)
        a.valu('v_add_u32', 'v13', 's9', 'v13')
        for b in range(NBUF):
            a.valu('v_add_u32', V(XR + 2 * b), b * BUFSZ, 'v13')
        XTS = 1024
    WR = 40
    nsel = g.nsel
    g.wread_setup(a, g, 8, SWN)
    for b in range(NBUF):
        for s_ in range(nsel):
            a.valu('v_add_u32', V(WR + nsel * b + s_), b * BUFSZ + XB, V(24 + s_))
    assert WR + nsel * NBUF <= 64
    TD = getattr(g, 'tdist', 0)
    if TD:
        g.touch_setup(a, g, SW)
        P += 1
    a.salu('s_lshl_b32', 's12', SW, 10)
    SWB = 's12'
    SWW = 's75'
    a.salu('s_mov_b32', 's13', 0)
    a.salu('s_mov_b32', 's14', 0)

    FB = 64
    MG = max(len(x) for x in groups)
    SU = getattr(g, 'stage_unit', False)
    if SU:
        SETSZ = 2 * (TM + NT) * 4

        def fxs(par, ks, tm):
            return V(FB + par * SETSZ + ks * (TM + NT) * 4 + tm * 4, 4)

        def fws(par, ks, t, hh=None):
            base = FB + par * SETSZ + ks * (TM + NT) * 4 + TM * 4 + t * 4
            if hh is None:
                return V(base, 4)
            return V(base + 2 * hh, 2)
        NV = FB + 2 * SETSZ
    else:
        NV = FB + 16 + 2 * MG * 4

    def fx(par, tm):
        return V(FB + par * 8 + tm * 4, 4)

    def fw(par, i, hh=None):
        base = FB + 16 + par * MG * 4 + i * 4
        if hh is None:
            return V(base, 4)
        return V(base + 2 * hh, 2)

    def acc(t, tm):
        return A((t * TM + tm) * 4, 4)

    lab_id = [0]

    def guarded(fs, cond):
        def f():
            lab_id[0] += 1
            lb = '%s_g%d' % (label, lab_id[0])
            a.branch('s_cbranch_vccz' if cond == 'dma' else 's_cbranch_vccnz', lb)
            for x in fs:
                x()
            a.label(lb)
        return f

    def touch():
        a.buf_load('buffer_load_dword', 'v1', 'v3', S(56, 4), 's73')
        a.salu('s_add_u32', 's73', 's73', 's74')

    def dma_list(buf):
        out = []
        if TD:
            out.append(touch)
        for j in range(NPX):
            def f(j=j):
                a.salu('s_add_u32', 'm0', SWB, buf * BUFSZ + j * 8192)
                a.dma(V(4 + j), S(40, 4), 's13')
            out.append(f)
        for (si, vo, ldsoff) in g.wdma:
            def f(si=si, vo=vo, ldsoff=ldsoff):
                if isinstance(ldsoff, str):
                    a.salu('s_add_u32', 'm0', ldsoff, buf * BUFSZ + XB)
                else:
                    a.salu('s_add_u32', 'm0', SWW, buf * BUFSZ + XB + ldsoff)
                a.dma(V(WV + vo), S(44 + 4 * si, 4), 's14')
            out.append(f)

        def adv():
            a.salu('s_add_u32', 's13', 's13', 128 if BK == 64 else 131072)
            a.salu('s_add_u32', 's14', 's14', BK * g.ldw)
        out.append(adv)
        return out

    def x_reads(par, buf, ks):
        return [lambda tm=tm: a.ds_read('ds_read_b128', fx(par, tm), V(XR + 2 * buf + ks), tm * XTS) for tm in range(TM)]

    def w_reads(par, buf, ks, gi):
        out = []
        for i, t in enumerate(groups[gi]):
            sel, imm = g.tiles[t]
            for hh in range(2):
                out.append(lambda i=i, sel=sel, imm=imm, hh=hh: a.ds_read(
                    'ds_read_b64_tr_b16', fw(par, i, hh), V(WR + nsel * buf + sel), imm + ks * g.kstep + hh * g.hstep))
        return out

    def mfma_list(xpar, wpar, gi):
        out = []
        for i, t in enumerate(groups[gi]):
            for tm in range(TM):
                if g.swapped[t]:
                    out.append(lambda t=t, tm=tm, i=i: a.mfma('16x16x32', acc(t, tm), fx(xpar, tm), fw(wpar, i), acc(t, tm)))
                else:
                    out.append(lambda t=t, tm=tm, i=i: a.mfma('16x16x32', acc(t, tm), fw(wpar, i), fx(xpar, tm), acc(t, tm)))
        return out

    def su_reads(par, buf):
        out = []
        for ks in range(2):
            for tm in range(TM):
                out.append(lambda tm=tm, ks=ks: a.ds_read('ds_read_b128', fxs(par, ks, tm), V(XR + 2 * buf + ks), tm * 2048))
            for t in range(NT):
                sel, imm = g.tiles[t]
                for hh in range(2):
                    out.append(lambda t=t, sel=sel, imm=imm, hh=hh, ks=ks: a.ds_read(
                        'ds_read_b64_tr_b16', fws(par, ks, t, hh), V(WR + nsel * buf + sel), imm + ks * g.kstep + hh * g.hstep))
        return out

    def su_mfmas(par):
        out = []
        for ks in range(2):
            for t in range(NT):
                for tm in range(TM):
                    if g.swapped[t]:
                        out.append(lambda t=t, tm=tm, ks=ks: a.mfma('16x16x32', acc(t, tm), fxs(par, ks, tm), fws(par, ks, t), acc(t, tm)))
                    else:
                        out.append(lambda t=t, tm=tm, ks=ks: a.mfma('16x16x32', acc(t, tm), fws(par, ks, t), fxs(par, ks, tm), acc(t, tm)))
        return out

    def su_stage(s, abs_s):
        buf = s % NBUF
        nxt = (s + 1) % NBUF
        par = s & 1
        altprio(par)
        if abs_s is not None and abs_s == S_ - 1:
            a.waitcnt(lgkm=0)
            for m in su_mfmas(par):
                m()
            return
        if abs_s is None:
            vm = P * (NBUF - 2)
        else:
            vm = P * (min(S_ - 1, abs_s + NBUF - 1) - (abs_s + 1)) + extra_vm[0]
        st = abs_s is not None and abs_s < 18
        if st:
            stamp(a)
        a.waitcnt(vm=vm, lgkm=0)
        if st:
            stamp(a)
        a.barrier()
        if st:
            stamp(a)
        reads = su_reads(par ^ 1, nxt)
        d = dma_list(buf) if (abs_s is None or abs_s + NBUF <= S_ - 1) else []
        others = []
        nr, nd = len(reads), len(d)
        j = 0
        for i, r_ in enumerate(reads):
            others.append(r_)
            while j < (i + 1) * nd // nr:
                others.append(d[j])
                j += 1
        others += d[j:]
        interleave(a, su_mfmas(par), others)

    lab_id = [0]
    extra_vm = [0]
    if 'prio' in os.environ.get('OPT', ''):
        a.salu('s_cmp_ge_u32', SW, 4, nodst=True)
        a.branch('s_cbranch_scc0', label + '_prio')
        a.other('s_setprio 1')
        a.label(label + '_prio')

    def guarded(fs, lo):
        def f():
            lab_id[0] += 1
            lb = '%s_g%d' % (label, lab_id[0])
            a.branch('s_cbranch_vccz' if lo else 's_cbranch_vccnz', lb)
            for x in fs:
                x()
            a.label(lb)
        return f

    STAG = getattr(g, 'stagger', False)
    ALT = 'alt' in os.environ.get('OPT', '')

    def altprio(par):
        if not ALT:
            return
        lab_id[0] += 1
        lb = '%s_p%d' % (label, lab_id[0])
        a.other('s_setprio %d' % par)
        a.branch('s_cbranch_vccz', lb)
        a.other('s_setprio %d' % (1 - par))
        a.label(lb)
    if STAG or ALT:
        a.salu('s_cmp_lt_u32', SW, 4, nodst=True)
        a.salu('s_cselect_b64', 'vcc', -1, 0)

    NU = NKS * G
    SPREAD = NBUF >= 3 and not SU

    def split_dma(buf):
        d = dma_list(buf)
        if STAG:
            p0 = [guarded([x], True) for x in d[:-1]]
            p1 = [guarded([x], False) for x in d[:-1]] + [d[-1]]
            return [p0, p1] + [[] for _ in range(NU - 2)]
        if not SPREAD:
            return [d] + [[] for _ in range(NU - 1)]
        parts = []
        n = len(d)
        for i in range(NU):
            parts.append(d[i * n // NU:(i + 1) * n // NU])
        return parts

    stamp(a)
    if TD:
        a.salu('s_mul_i32', 's73', 's74', TD)
    for s in range(NBUF - 1):
        for f in dma_list(s):
            f()
    for f in split_dma(NBUF - 1)[0]:
        f()
    n_first = len([1 for f in split_dma(NBUF - 1)[0]])
    part0_dma = min(n_first, P)
    if STAG:
        part0_dma = 0
    NACC = TM * NT * 4
    for i in range(NACC):
        a.valu('v_accvgpr_write_b32', A(i), 0)
    stamp(a)
    a.waitcnt(vm=P * (NBUF - 2) + part0_dma)
    a.barrier()
    stamp(a)
    if SU:
        for f in su_reads(0, 0):
            f()
    else:
        for f in x_reads(0, 0, 0) + w_reads(0, 0, 0, 0):
            f()

    def stage(s, abs_s):
        if SU:
            return su_stage(s, abs_s)
        buf = s % NBUF
        nxt = (s + 1) % NBUF
        prev = (s - 1) % NBUF
        units = [(ks, gi) for ks in range(NKS) for gi in range(G)]
        have_pending = abs_s is None or (abs_s - 1 + NBUF <= S_ - 1)
        pend = split_dma(prev) if have_pending else [[] for _ in range(NU)]
        for u, (ks, gi) in enumerate(units):
            wpar = u & 1
            xpar = (s * NKS + ks) & 1
            altprio(u & 1)
            lastu = (u == len(units) - 1)
            if lastu and abs_s is not None and abs_s == S_ - 1:
                a.waitcnt(lgkm=0)
                for m in mfma_list(xpar, wpar, gi):
                    m()
                return
            if lastu:
                if abs_s is None:
                    vm = P * (NBUF - 2)
                else:
                    vm = P * (min(S_ - 1, abs_s + NBUF - 1) - (abs_s + 1))
                a.waitcnt(lgkm=0)
                st = abs_s is not None and abs_s < 18
                if st:
                    stamp(a)
                a.waitcnt(vm=vm)
                if st:
                    stamp(a)
                a.barrier()
                if st:
                    stamp(a)
                reads = x_reads(((s + 1) * NKS) & 1, nxt, 0) + w_reads(wpar ^ 1, nxt, 0, 0)
                others = list(reads)
                if abs_s is None or abs_s + NBUF <= S_ - 1:
                    others += split_dma(buf)[0]
                interleave(a, mfma_list(xpar, wpar, gi), others, front=len(reads))
            else:
                nks, ngi = units[u + 1]
                reads = []
                if nks != ks:
                    reads += x_reads(nks, buf, nks)
                reads += w_reads(wpar ^ 1, buf, nks, ngi)
                a.waitcnt(lgkm=0)
                interleave(a, mfma_list(xpar, wpar, gi), reads + pend[u + 1], front=len(reads))

    ntail = NBUF
    if STAMP == 'full':
        ntail = S_
    nloop = (S_ - ntail) // NBUF
    if nloop:
        a.salu('s_mov_b32', 's15', nloop)
        a.label(label + '_loop')
        for s in range(NBUF):
            stage(s, None)
        a.salu('s_sub_u32', 's15', 's15', 1)
        a.salu('s_cmp_lg_u32', 's15', 0, nodst=True)
        a.branch('s_cbranch_scc1', label + '_loop')
    stamp(a)
    if hasattr(g.epilogue, 'pre'):
        sv = a.abl
        a.abl = ''
        a.nop(4)
        extra_vm[0] = g.epilogue.pre(a, g, TM, SM, SN, SWM, SWN)
        a.abl = sv
    for s in range(S_ - ntail, S_):
        stage(s, s)
    a.nop(12)
    stamp(a)
    a.abl = ''
    g.epilogue(a, g, acc, TM, SM, SN, SWM, SWN)
    stamp(a)
    a.waitcnt(vm=0)
    stamp(a)
    stamp_dump(a, int(os.environ.get('STAMPWG', '0')))
    end_kernel(a, label)
    ao = max(NV, 128, 148 if hasattr(g.epilogue, 'pre') else 0)
    ao = (ao + 3) // 4 * 4
    assert ao + NACC <= 256, (label, ao, NACC)
    KERNELS.append((label, (NWG, 1, 1), (512, 1, 1), NBUF * BUFSZ, ao + NACC, ao, 96))


def wdma_setup_128(a, g, WV, sw):
    a.valu('v_and_b32', 'v13', 1, 'v11')
    a.salu('s_and_b32', 's9', sw, 1)
    a.salu('s_lshl_b32', 's9', 's9', 1)
    a.valu('v_add_u32', 'v13', 's9', 'v13')
    a.valu('v_bfe_u32', 'v14', 'v2', 1, 2)
    a.valu('v_xor_b32', 'v13', 'v13', 'v14')
    a.valu('v_lshlrev_b32', 'v13', 5, 'v13')
    a.valu('v_and_b32', 'v14', 1, 'v2')
    a.valu('v_lshl_add_u32', 'v13', 'v14', 4, 'v13')
    a.salu('s_lshl_b32', 's9', sw, 3)
    a.valu('v_add_u32', 'v14', 's9', 'v10')
    a.salu('s_mov_b32', 's9', g.ldw)
    a.valu('v_mul_lo_u32', 'v14', 'v14', 's9')
    a.valu('v_add_u32', V(WV), 'v13', 'v14')
    a.salu('s_lshl_b32', 's75', sw, 10)


def wread_setup_128(a, g, _unused, swn):
    a.valu('v_lshrrev_b32', 'v13', 1, 'v12')
    a.valu('v_and_b32', 'v14', 1, 'v11')
    a.valu('v_lshl_add_u32', 'v13', 'v14', 1, 'v13')
    a.salu('s_lshl_b32', 's9', swn, 1)
    a.valu('v_xor_b32', 'v13', 's9', 'v13')
    a.valu('v_lshl_add_u32', 'v14', 'v11', 3, 'v12')
    a.valu('v_lshlrev_b32', 'v14', 7, 'v14')
    a.valu('v_lshl_add_u32', 'v14', 'v15', 3, 'v14')
    a.valu('v_lshl_add_u32', 'v24', 'v13', 5, 'v14')
    a.valu('v_xor_b32', 'v25', 32, 'v24')


def wdma_setup_448(a, g, WV, sw):
    a.salu('s_and_b32', 's76', sw, 3)
    a.salu('s_cmp_lt_u32', sw, 4, nodst=True)
    for i in range(4):
        a.salu('s_cselect_b32', S(44 + i), S(44 + i), S(48 + i))
    a.salu('s_cselect_b32', 's75', 0, 28672)
    a.salu('s_lshl_b32', 's9', 's76', 10)
    a.salu('s_add_u32', 's75', 's75', 's9')
    a.salu('s_mov_b32', 's10', 37450)
    a.salu('s_mov_b32', 's11', g.ldw)
    for j in range(7):
        a.salu('s_lshl_b32', 's9', 's76', 6)
        a.salu('s_add_u32', 's9', 's9', 256 * j)
        a.valu('v_add_u32', 'v13', 's9', 'v2')
        a.valu('v_mul_lo_u32', 'v14', 'v13', 's10')
        a.valu('v_lshrrev_b32', 'v14', 20, 'v14')
        a.valu('v_mul_u32_u24', 'v9', 28, 'v14')
        a.valu('v_sub_u32', 'v13', 'v13', 'v9')
        a.valu('v_bfe_u32', 'v9', 'v14', 3, 1)
        a.valu('v_lshlrev_b32', 'v9', 1, 'v9')
        a.valu('v_xor_b32', 'v13', 'v13', 'v9')
        a.valu('v_mul_lo_u32', 'v14', 'v14', 's11')
        a.valu('v_lshl_add_u32', V(WV + j), 'v13', 4, 'v14')


def wdma_setup_448b(a, g, WV, sw):
    a.salu('s_and_b32', 's76', sw, 3)
    a.salu('s_cmp_lt_u32', sw, 4, nodst=True)
    for i in range(4):
        a.salu('s_cselect_b32', S(44 + i), S(44 + i), S(48 + i))
    a.salu('s_cselect_b32', 's75', 0, 14336)
    a.salu('s_lshl_b32', 's9', 's76', 10)
    a.salu('s_add_u32', 's75', 's75', 's9')
    a.salu('s_cmp_lt_u32', 's76', 2, nodst=True)
    a.salu('s_cselect_b32', 's77', 3, 2)
    a.salu('s_lshl_b32', 's77', 's77', 8)
    a.salu('s_lshl_b32', 's79', 's77', 4)
    a.salu('s_add_u32', 's79', 's79', 's75')
    a.salu('s_mov_b32', 's10', 37450)
    a.salu('s_mov_b32', 's11', g.ldw)
    for j in range(4):
        a.salu('s_lshl_b32', 's9', 's76', 6)
        if j < 3:
            a.salu('s_add_u32', 's9', 's9', 256 * j)
        else:
            a.salu('s_add_u32', 's9', 's9', 's77')
        a.valu('v_add_u32', 'v13', 's9', 'v2')
        a.valu('v_mul_lo_u32', 'v14', 'v13', 's10')
        a.valu('v_lshrrev_b32', 'v14', 20, 'v14')
        a.valu('v_mul_u32_u24', 'v9', 28, 'v14')
        a.valu('v_sub_u32', 'v13', 'v13', 'v9')
        a.valu('v_bfe_u32', 'v9', 'v14', 3, 1)
        a.valu('v_lshlrev_b32', 'v9', 1, 'v9')
        a.valu('v_xor_b32', 'v13', 'v13', 'v9')
        a.valu('v_mul_lo_u32', 'v14', 'v14', 's11')
        a.valu('v_lshl_add_u32', V(WV + j), 'v13', 4, 'v14')


def wread_setup_448(a, g, _unused, swn):
    a.valu('v_lshl_add_u32', 'v14', 'v11', 3, 'v12')
    a.valu('v_mul_u32_u24', 'v14', 448, 'v14')
    a.valu('v_lshl_add_u32', 'v14', 'v15', 3, 'v14')
    a.salu('s_mul_i32', 's9', swn, 224)
    a.valu('v_add_u32', 'v14', 's9', 'v14')
    a.valu('v_and_b32', 'v13', 1, 'v11')
    a.valu('v_lshlrev_b32', 'v13', 5, 'v13')
    a.valu('v_add_u32', 'v24', 'v14', 'v13')
    a.valu('v_sub_u32', 'v25', 'v14', 'v13')
    a.salu('s_cmp_eq_u32', swn, 0, nodst=True)
    a.branch('s_cbranch_scc1', g.label + '_wrs')
    a.valu('v_mov_b32', 'v13', 'v24')
    a.valu('v_mov_b32', 'v24', 'v25')
    a.valu('v_mov_b32', 'v25', 'v13')
    a.label(g.label + '_wrs')
    a.nop(2)


def make_touch_setup(wrow_lines, wmats):
    def f(a, g, sw):
        BK = getattr(g, 'bk', 64)
        xl = 512 if BK == 64 else 256
        nl = xl + BK * wrow_lines * len(wmats)
        n = nl // 256
        assert nl % 256 == 0 and xl % n == 0 and (BK * wrow_lines) % n == 0
        a.salu('s_lshr_b32', 's9', 's2', 3)
        a.salu('s_lshl_b32', 's9', 's9', 3)
        a.salu('s_add_u32', 's9', 's9', sw)
        a.salu('s_mul_i32', 's9', 's9', n)
        a.valu('v_add_u32', 'v13', 's9', 'v2')
        lab = g.label + '_ts'
        a.salu('s_cmp_lt_u32', 's9', xl, nodst=True)
        a.branch('s_cbranch_scc0', lab + '_w')
        a.salu('s_and_b32', 's10', 's2', 3)
        a.salu('s_mul_i32', 's10', 's10', 512 * (g.lda if BK == 64 else 64))
        a.salu('s_add_u32', 's11', 's10', g.x_off)
        a.salu('s_sub_u32', 's10', 2048 * g.lda, 's10')
        srd(a, 56, g.x_ptr, 's11', 's10')
        if BK == 64:
            a.salu('s_mov_b32', 's10', g.lda)
            a.valu('v_mul_lo_u32', 'v3', 'v13', 's10')
            a.salu('s_mov_b32', 's74', 128)
        else:
            a.valu('v_lshlrev_b32', 'v3', 7, 'v13')
            a.salu('s_mov_b32', 's74', 131072)
        a.branch('s_branch', lab + '_e')
        a.label(lab + '_w')
        a.reset_hist()
        a.salu('s_sub_u32', 's9', 's9', xl)
        a.valu('v_subrev_u32', 'v13', xl, 'v13')
        per = BK * wrow_lines
        a.salu('s_bfe_u32', 's72', 's2', '0x10002')
        for mi, (ptr, tot, pof, segs) in enumerate(wmats):
            if mi + 1 < len(wmats):
                a.salu('s_cmp_lt_u32', 's9', per, nodst=True)
                a.branch('s_cbranch_scc0', lab + '_w%d' % (mi + 1))
            a.salu('s_mul_i32', 's10', 's72', pof)
            a.salu('s_sub_u32', 's11', tot, 's10')
            srd(a, 56, ptr, 's10', 's11')
            if mi + 1 < len(wmats):
                a.branch('s_branch', lab + '_wd')
                a.label(lab + '_w%d' % (mi + 1))
                a.reset_hist()
                a.salu('s_sub_u32', 's9', 's9', per)
                a.valu('v_subrev_u32', 'v13', per, 'v13')
        a.label(lab + '_wd')
        a.reset_hist()
        a.nop(2)
        if wrow_lines & (wrow_lines - 1) == 0:
            a.valu('v_lshrrev_b32', 'v14', wrow_lines.bit_length() - 1, 'v13')
        else:
            a.salu('s_mov_b32', 's10', {24: 43691, 28: 37450}[wrow_lines])
            a.valu('v_mul_lo_u32', 'v14', 'v13', 's10')
            a.valu('v_lshrrev_b32', 'v14', 20, 'v14')
        a.valu('v_mul_u32_u24', 'v9', wrow_lines, 'v14')
        a.valu('v_sub_u32', 'v13', 'v13', 'v9')
        a.salu('s_mov_b32', 's10', g.ldw)
        a.valu('v_mul_lo_u32', 'v3', 'v14', 's10')
        segs = wmats[0][3]
        if segs > 1:
            a.valu('v_lshrrev_b32', 'v14', 3, 'v13')
            a.valu('v_lshl_add_u32', 'v3', 'v14', 11, 'v3')
            a.valu('v_and_b32', 'v13', 7, 'v13')
        a.valu('v_lshl_add_u32', 'v3', 'v13', 7, 'v3')
        a.salu('s_mov_b32', 's74', BK * g.ldw)
        a.label(lab + '_e')
        a.reset_hist()
        a.nop(2)
        a.valu('v_cmp_gt_u32', 'vcc', n, 'v2')
        a.valu('v_mov_b32', 'v13', '0x7f000000')
        a.valu('v_cndmask_b32', 'v3', 'v13', 'v3')
        a.salu('s_mov_b32', 's73', 0)
    return f


def ep_lane_consts(a):
    a.valu('v_and_b32', 'v10', 15, 'v2')
    a.valu('v_lshrrev_b32', 'v11', 4, 'v2')
    a.valu('v_and_b32', 'v12', 1, 'v11')
    a.valu('v_lshlrev_b32', 'v12', 5, 'v12')
    a.valu('v_lshrrev_b32', 'v13', 1, 'v11')
    a.valu('v_lshl_add_u32', 'v12', 'v13', 4, 'v12')


def read_acc(a, dst, accr):
    lo = int(accr[2:].split(':')[0])
    for i in range(4):
        a.valu('v_accvgpr_read_b32', V(dst + i), A(lo + i))


def ep_qkv(a, g, acc, TM, SM, SN, SWM, SWN):
    ep_lane_consts(a)
    a.salu('s_lshl_b32', 's9', SN, 1)
    a.salu('s_add_u32', 's9', 's9', SWN)
    a.salu('s_lshl_b32', 's10', SM, 7)
    a.salu('s_lshl_b32', 's11', SWM, 5)
    a.salu('s_add_u32', 's10', 's10', 's11')
    a.salu('s_lshl_b32', 's11', 's9', 17)
    srd(a, 60, P_WS, WS_Q, 4 * MB)
    srd(a, 64, P_WS, WS_K, 4 * MB)
    srd(a, 68, P_WS, WS_VT, 4 * MB)
    a.valu('v_add_u32', 'v14', 's10', 'v10')
    a.valu('v_lshlrev_b32', 'v14', 6, 'v14')
    a.valu('v_add_u32', 'v14', 'v14', 'v12')
    a.valu('v_add_u32', 'v14', 's11', 'v14')
    a.salu('s_mov_b32', 's12', hexf(32 ** -0.5 * 1.4426950408889634))
    T = 32
    for seg in range(2):
        for tm in range(TM):
            b = T + (seg * TM + tm) * 16
            read_acc(a, b, acc(2 * seg, tm))
            read_acc(a, b + 4, acc(2 * seg + 1, tm))
            if seg == 0:
                for i in range(8):
                    a.valu('v_mul_f32', V(b + i), 's12', V(b + i))
            for i in range(4):
                a.valu('v_cvt_pk_bf16_f32', V(b + 8 + i), V(b + 2 * i), V(b + 2 * i + 1))
            a.permlane('v_permlane16_swap_b32', V(b + 8), V(b + 10))
            a.permlane('v_permlane16_swap_b32', V(b + 9), V(b + 11))
            a.buf_store('buffer_store_dwordx4', V(b + 8, 4), 'v14', S(60 + 4 * seg, 4), off=tm * 1024)
    a.salu('s_lshl_b32', 's12', 's10', 6)
    a.salu('s_add_u32', 's12', 's12', 's11')
    a.valu('v_lshrrev_b32', 'v15', 1, 'v11')
    a.valu('v_lshlrev_b32', 'v15', 10, 'v15')
    a.valu('v_lshl_add_u32', 'v15', 'v10', 5, 'v15')
    a.valu('v_and_b32', 'v13', 1, 'v11')
    a.valu('v_lshl_add_u32', 'v15', 'v13', 4, 'v15')
    a.valu('v_add_u32', 'v15', 's12', 'v15')
    for t in range(2):
        b = T + 64 + t * 16
        read_acc(a, b, acc(4 + t, 0))
        read_acc(a, b + 4, acc(4 + t, 1))
        for i in range(4):
            a.valu('v_cvt_pk_bf16_f32', V(b + 8 + i), V(b + 2 * i), V(b + 2 * i + 1))
        a.permlane('v_permlane32_swap_b32', V(b + 8), V(b + 10))
        a.permlane('v_permlane32_swap_b32', V(b + 9), V(b + 11))
        a.buf_store('buffer_store_dwordx4', V(b + 8, 4), 'v15', S(68, 4), off=t * 512)


def make_ep_resid(res_ptr, res_off, gate_idx, dst_ptr, dst_off):
    GV, RV, SO = 128, 136, 144

    def pre(a, g, TM, SM, SN, SWM, SWN):
        ep_lane_consts(a)
        a.salu('s_lshl_b32', 's9', SN, 6)
        a.salu('s_lshl_b32', 's10', SWN, 5)
        a.salu('s_add_u32', 's9', 's9', 's10')
        a.salu('s_lshl_b32', 's10', SM, 7)
        a.salu('s_lshl_b32', 's11', SWM, 5)
        a.salu('s_add_u32', 's10', 's10', 's11')
        srd(a, 60, res_ptr, res_off, 4 * MB)
        srd(a, 64, dst_ptr, dst_off, 4 * MB)
        srd(a, 68, P_WS, WS_MOD, 6144 * 4)
        a.valu('v_add_u32', 'v14', 's10', 'v10')
        a.valu('v_lshlrev_b32', 'v14', 11, 'v14')
        a.salu('s_lshl_b32', 's11', 's9', 1)
        a.valu('v_add_u32', 'v14', 's11', 'v14')
        a.valu('v_lshl_add_u32', 'v15', 'v11', 3, 'v14')
        a.valu('v_add_u32', V(SO), 'v14', 'v12')
        a.salu('s_lshl_b32', 's11', 's9', 2)
        a.salu('s_add_u32', 's11', 's11', gate_idx * 4096)
        a.valu('v_lshlrev_b32', 'v13', 4, 'v11')
        a.buf_load('buffer_load_dwordx4', V(GV, 4), 'v13', S(68, 4), 's11')
        a.buf_load('buffer_load_dwordx4', V(GV + 4, 4), 'v13', S(68, 4), 's11', off=64)
        for tm in range(TM):
            a.salu('s_mov_b32', 's9', tm * 32768)
            for t in range(2):
                a.buf_load('buffer_load_dwordx2', V(RV + tm * 4 + t * 2, 2), 'v15', S(60, 4), 's9', off=t * 32)
        return 2 + 2 * TM

    def ep(a, g, acc, TM, SM, SN, SWM, SWN):
        T = 64
        a.waitcnt(vm=0)
        for tm in range(TM):
            b = T + tm * 24
            read_acc(a, b, acc(0, tm))
            read_acc(a, b + 4, acc(1, tm))
            for i in range(8):
                bf16_round(a, V(b + i), V(b + i))
                a.valu('v_mul_f32', V(b + i), V(b + i), V(GV + i))
                bf16_round(a, V(b + i), V(b + i))
            for i in range(4):
                r = V(RV + tm * 4 + i)
                a.valu('v_lshlrev_b32', V(b + 12 + 2 * i), 16, r)
                a.valu('v_and_b32', V(b + 13 + 2 * i), '0xffff0000', r)
            for i in range(8):
                a.valu('v_add_f32', V(b + i), V(b + i), V(b + 12 + i))
            for i in range(4):
                a.valu('v_cvt_pk_bf16_f32', V(b + 8 + i), V(b + 2 * i), V(b + 2 * i + 1))
            a.permlane('v_permlane16_swap_b32', V(b + 8), V(b + 10))
            a.permlane('v_permlane16_swap_b32', V(b + 9), V(b + 11))
            a.salu('s_mov_b32', 's12', tm * 32768)
            a.buf_store('buffer_store_dwordx4', V(b + 8, 4), V(SO), S(64, 4), 's12')
    ep.pre = pre
    return ep


def ep_gateup(a, g, acc, TM, SM, SN, SWM, SWN):
    ep_lane_consts(a)
    a.salu('s_mul_i32', 's9', SN, 224)
    a.salu('s_mul_i32', 's10', SWN, 112)
    a.salu('s_add_u32', 's9', 's9', 's10')
    a.salu('s_lshl_b32', 's10', SM, 7)
    a.salu('s_lshl_b32', 's11', SWM, 5)
    a.salu('s_add_u32', 's10', 's10', 's11')
    srd(a, 60, P_WS, WS_HH, 2048 * 7168)
    a.valu('v_add_u32', 'v14', 's10', 'v10')
    a.salu('s_mov_b32', 's11', 7168)
    a.valu('v_mul_lo_u32', 'v14', 'v14', 's11')
    a.salu('s_lshl_b32', 's11', 's9', 1)
    a.valu('v_add_u32', 'v14', 's11', 'v14')
    a.valu('v_lshl_add_u32', 'v15', 'v11', 3, 'v14')
    a.valu('v_add_u32', 'v16', 'v14', 'v12')
    T = 32
    n = 0
    for tm in range(TM):
        a.salu('s_mov_b32', 's12', tm * 16 * 7168)
        for pr in range(4):
            b = T + (n % 4) * 24
            n += 1
            nt = 2 if pr < 3 else 1
            for q in range(nt):
                t = 2 * pr + q
                read_acc(a, b + 4 * q, acc(t, tm))
                read_acc(a, b + 12 + 4 * q, acc(7 + t, tm))
            for i in range(4 * nt):
                bf16_round(a, V(b + i), V(b + i))
                bf16_round(a, V(b + 12 + i), V(b + 12 + i))
                a.valu('v_mul_f32', V(b + i), V(b + i), V(b + 12 + i))
            for i in range(2 * nt):
                a.valu('v_cvt_pk_bf16_f32', V(b + 8 + i), V(b + 2 * i), V(b + 2 * i + 1))
            if nt == 2:
                a.permlane('v_permlane16_swap_b32', V(b + 8), V(b + 10))
                a.permlane('v_permlane16_swap_b32', V(b + 9), V(b + 11))
                a.buf_store('buffer_store_dwordx4', V(b + 8, 4), 'v16', S(60, 4), 's12', off=pr * 64)
            else:
                a.buf_store('buffer_store_dwordx2', V(b + 8, 2), 'v15', S(60, 4), 's12', off=pr * 64)


PFD = int(os.environ.get('PFD', '4'))
TDIST = int(os.environ.get('TDIST', '0'))


def gemm_qkv():
    g = Gemm()
    g.label = 'qkv_kernel'
    g.K = 1024
    g.lda = 2048
    g.ldw = 6144
    g.x_ptr, g.x_off = P_WS, WS_H1
    g.nbuf = 4
    g.wbytes = 3 * 8192
    tot = 1024 * 6144
    g.wsrd = [(P_WQKV, 128, seg * 2048, tot) for seg in range(3)]
    g.npw = 3
    g.wdma = [(seg, 0, seg * 8192) for seg in range(3)]
    g.tiles = [(t, seg * 8192) for seg in range(3) for t in range(2)]
    g.groups = [[0, 1, 2], [3, 4, 5]]
    g.kstep, g.hstep, g.nsel = 4096, 512, 2
    g.swapped = [False, False, False, False, True, True]
    g.wdma_setup, g.wread_setup = wdma_setup_128, wread_setup_128
    g.touch_setup = make_touch_setup(24, [(P_WQKV, tot, 1024, 3)])
    g.pfd = PFD + 2
    g.epilogue = ep_qkv
    g.touch_setup = make_touch_setup(24, [(P_WQKV, tot, 1024, 3)])
    g.tdist = TDIST
    g.stage_unit = True
    return g


def gemm_small(label, K, x_off, wptr, ep):
    g = Gemm()
    g.label = label
    g.K = K
    g.lda = 2 * K
    g.ldw = 2048
    g.x_ptr, g.x_off = P_WS, x_off
    g.nbuf = 4
    g.wbytes = 8192
    g.wsrd = [(wptr, 128, 0, K * 2048)]
    g.npw = 1
    g.wdma = [(0, 0, 0)]
    g.tiles = [(0, 0), (1, 0)]
    g.groups = [[0, 1]]
    g.kstep, g.hstep, g.nsel = 4096, 512, 2
    g.swapped = [False, False]
    g.wdma_setup, g.wread_setup = wdma_setup_128, wread_setup_128
    g.touch_setup = make_touch_setup(8, [(wptr, K * 2048, 1024, 1)])
    g.pfd = PFD + 4
    g.epilogue = ep
    g.stage_unit = True
    g.touch_setup = make_touch_setup(8, [(wptr, K * 2048, 1024, 1)])
    g.tdist = TDIST
    return g


def gemm_wo():
    return gemm_small('wo_kernel', 1024, WS_O, P_WO, make_ep_resid(P_X, 0, 2, P_WS, WS_X1))


def gemm_down():
    return gemm_small('down_kernel', 3584, WS_HH, P_WD, make_ep_resid(P_WS, WS_X1, 5, P_OUT, 0))


def gemm_gateup():
    g = Gemm()
    g.label = 'gateup_kernel'
    g.K = 1024
    g.bk = 32
    g.lda = 2048
    g.ldw = 7168
    g.x_ptr, g.x_off = P_WS, WS_H2
    g.nbuf = 4
    g.wbytes = 2 * 14336
    tot = 1024 * 7168
    g.wsrd = [(P_WG, 448, 0, tot), (P_WU, 448, 0, tot)]
    g.npw = 4
    g.wdma = [(0, j, j * 4096) for j in range(3)] + [(0, 3, 's79')]
    g.tiles = [(tt & 1, m * 14336 + tt * 32) for m in range(2) for tt in range(7)]
    g.groups = [list(range(7)), list(range(7, 14))]
    g.kstep, g.hstep, g.nsel = 32 * 448, 4 * 448, 2
    g.swapped = [False] * 14
    g.wdma_setup, g.wread_setup = wdma_setup_448b, wread_setup_448
    g.epilogue = ep_gateup
    g.touch_setup = make_touch_setup(28, [(P_WG, tot, 3584, 1), (P_WU, tot, 3584, 1)])
    g.tdist = 2 * TDIST
    return g


def k_attn(a):
    label = 'attn_kernel'
    NWG = 256
    begin_kernel(a, label, NWG)
    a.salu('s_and_b32', 's3', 's2', 7)
    a.salu('s_lshl_b32', 's3', 's3', 2)
    a.salu('s_bfe_u32', 's4', 's2', '0x20003')
    a.salu('s_add_u32', 's3', 's3', 's4')
    a.salu('s_lshr_b32', 's4', 's2', 5)
    a.valu('v_lshrrev_b32', 'v1', 6, 'v0')
    a.readlane('v_readfirstlane_b32', 's6', 'v1')
    a.valu('v_and_b32', 'v2', 63, 'v0')
    a.valu('v_and_b32', 'v3', 31, 'v2')
    a.valu('v_lshrrev_b32', 'v4', 5, 'v2')
    a.waitcnt(lgkm=0)
    stamp(a, 'v217')
    a.salu('s_lshl_b32', 's7', 's3', 17)
    a.salu('s_add_u32', 's8', 's7', WS_Q)
    srd(a, 40, P_WS, 's8', 131072)
    a.salu('s_add_u32', 's8', 's7', WS_K)
    srd(a, 44, P_WS, 's8', 131072)
    a.salu('s_add_u32', 's8', 's7', WS_VT)
    srd(a, 48, P_WS, 's8', 131072)
    srd(a, 52, P_WS, WS_O, 4 * MB)
    a.salu('s_lshl_b32', 's8', 's4', 8)
    a.salu('s_lshl_b32', 's9', 's6', 5)
    a.salu('s_add_u32', 's8', 's8', 's9')
    a.valu('v_add_u32', 'v5', 's8', 'v3')
    a.valu('v_lshlrev_b32', 'v6', 6, 'v5')
    a.valu('v_lshl_add_u32', 'v6', 'v4', 4, 'v6')
    QF = 16
    a.buf_load('buffer_load_dwordx4', V(QF, 4), 'v6', S(40, 4))
    a.buf_load('buffer_load_dwordx4', V(QF + 4, 4), 'v6', S(40, 4), off=32)
    a.valu('v_lshrrev_b32', 'v7', 4, 'v2')
    a.valu('v_and_b32', 'v8', 3, 'v2')
    a.valu('v_xor_b32', 'v7', 'v7', 'v8')
    a.valu('v_lshrrev_b32', 'v8', 2, 'v2')
    a.valu('v_lshlrev_b32', 'v8', 6, 'v8')
    a.valu('v_lshl_add_u32', 'v8', 'v7', 4, 'v8')
    a.salu('s_lshl_b32', 's9', 's6', 10)
    a.valu('v_add_u32', 'v8', 's9', 'v8')
    a.valu('v_add_u32', 'v9', 8192, 'v8')
    a.valu('v_lshrrev_b32', 'v10', 4, 'v2')
    a.valu('v_xor_b32', 'v10', 'v10', 'v2')
    a.valu('v_and_b32', 'v10', 1, 'v10')
    a.valu('v_lshrrev_b32', 'v11', 1, 'v2')
    a.valu('v_lshlrev_b32', 'v11', 5, 'v11')
    a.valu('v_lshl_add_u32', 'v10', 'v10', 4, 'v11')
    a.valu('v_add_u32', 'v10', 's9', 'v10')
    a.valu('v_add_u32', 'v11', 8192, 'v10')
    a.valu('v_bfe_u32', 'v12', 'v3', 2, 2)
    a.valu('v_xor_b32', 'v12', 'v12', 'v4')
    a.valu('v_lshlrev_b32', 'v13', 6, 'v3')
    a.valu('v_lshl_add_u32', 'v12', 'v12', 4, 'v13')
    a.valu('v_xor_b32', 'v13', 32, 'v12')
    a.valu('v_bfe_u32', 'v14', 'v3', 3, 1)
    a.valu('v_xor_b32', 'v14', 'v14', 'v4')
    a.valu('v_lshlrev_b32', 'v15', 5, 'v3')
    a.valu('v_lshl_add_u32', 'v14', 'v14', 4, 'v15')
    a.valu('v_add_u32', 'v14', 16384, 'v14')
    KR0, KR1, VR = 'v12', 'v13', 'v14'
    a.valu('v_add_u32', 'v197', 65536, 'v12')
    a.valu('v_add_u32', 'v198', 65536, 'v13')
    a.valu('v_add_u32', 'v199', 65536, 'v14')
    SKOFF = 's10'
    a.salu('s_mov_b32', SKOFF, 0)
    STHR, SFLOOR = 's11', 's12'
    a.salu('s_mov_b32', STHR, '0xff800000')
    a.salu('s_mov_b32', SFLOOR, '0xff800000')

    def dma_stage(buf):
        out = []
        for i, vo in enumerate(('v8', 'v9')):
            def f(i=i, vo=vo):
                a.salu('s_add_u32', 'm0', 's9', buf * 32768 + i * 8192)
                a.dma(vo, S(44, 4), SKOFF)
            out.append(f)
        for i, vo in enumerate(('v10', 'v11')):
            def f(i=i, vo=vo):
                a.salu('s_add_u32', 'm0', 's9', buf * 32768 + 16384 + i * 8192)
                a.dma(vo, S(48, 4), SKOFF)
            out.append(f)
        out.append(lambda: a.salu('s_add_u32', SKOFF, SKOFF, 16384))
        return out

    KF = 24
    VF = 40
    ONE = 56
    PB = 60
    OA = 76
    LA = 92
    CM = 108
    SS = 124
    TMP = 188
    PB2 = 200
    FV = 216
    SFLAG = 's14'
    a.salu('s_mov_b32', SFLAG, 0)
    for i in range(4):
        a.valu('v_mov_b32', V(ONE + i), '0x3f803f80')
    for i in range(16):
        a.valu('v_mov_b32', V(OA + i), 0)
        a.valu('v_mov_b32', V(LA + i), 0)
        a.valu('v_mov_b32', V(CM + i), 0)

    def k_reads(buf, it):
        out = []
        for kt in range(2):
            for st in range(2):
                out.append(lambda kt=kt, st=st: a.ds_read('ds_read_b128', V(KF + kt * 8 + st * 4, 4),
                                                          ((KR0, KR1), (KR0, KR1), ('v197', 'v198'))[buf][st],
                                                          (buf % 2) * 32768 + (it * 2 + kt) * 2048))
        return out

    def v_reads(buf, it):
        return [lambda u=u: a.ds_read('ds_read_b128', V(VF + u * 4, 4), (VR, VR, 'v199')[buf], (buf % 2) * 32768 + (it * 4 + u) * 1024)
                for u in range(4)]

    def s_mfmas(ss):
        out = []
        for kt in range(2):
            d = V(SS + ss * 32 + kt * 16, 16)
            out.append(lambda kt=kt, d=d: a.mfma('32x32x16', d, V(KF + kt * 8, 4), V(QF, 4), V(CM, 16)))
            out.append(lambda kt=kt, d=d: a.mfma('32x32x16', d, V(KF + kt * 8 + 4, 4), V(QF + 4, 4), d))
        return out

    if 'aprio' in os.environ.get('OPT', ''):
        a.salu('s_cmp_ge_u32', 's6', 4, nodst=True)
        a.branch('s_cbranch_scc0', 'attn_prio')
        a.other('s_setprio 1')
        a.label('attn_prio')
    a.salu('s_lshl_b32', 's78', 's2', 3)
    a.salu('s_add_u32', 's78', 's78', 's6')
    for mi, (ptr, nbytes, n) in enumerate([(P_WO, 1024 * 2048, 8), (P_WG, 1024 * 7168, 28), (P_WU, 1024 * 7168, 28), (P_WD, 3584 * 2048, 28)]):
        srd(a, 56 + 4 * mi, ptr, 0, nbytes)
        a.salu('s_mul_i32', 's77', 's78', n * 128)
        a.valu('v_lshlrev_b32', V(TMP + 4 + mi), 7, 'v2')
        a.valu('v_add_u32', V(TMP + 4 + mi), 's77', V(TMP + 4 + mi))
        a.valu('v_cmp_gt_u32', 'vcc', n, 'v2')
        a.valu('v_mov_b32', V(TMP + 8), '0x7f000000')
        a.valu('v_cndmask_b32', V(TMP + 4 + mi), V(TMP + 8), V(TMP + 4 + mi))
    for f in dma_stage(0):
        f()
    for f in dma_stage(1):
        f()
    a.waitcnt(vm=4)
    a.barrier()
    for f in k_reads(0, 0):
        f()
    a.waitcnt(lgkm=0)
    for f in s_mfmas(0):
        f()
    for f in k_reads(0, 1):
        f()
    for f in v_reads(0, 0):
        f()

    rare_id = [0]

    def pv_mfmas(pb):
        pv = []
        for u in range(4):
            pv.append(lambda u=u: a.mfma('32x32x16', V(OA, 16), V(VF + u * 4, 4), V(pb + u * 4, 4), V(OA, 16)))
            pv.append(lambda u=u: a.mfma('32x32x16', V(LA, 16), V(ONE, 4), V(pb + u * 4, 4), V(LA, 16)))
        return pv

    def pos(st, it, d):
        j = it + d
        return ((st + j // 4) % 3, j % 4)

    def iteration(st, it, ss, gidx, first=False):
        sb = SS + ss * 32
        pb_cur = (PB, PB2)[ss]
        pb_prev = (PB, PB2)[ss ^ 1]
        NIT = 32
        last = gidx is not None and gidx == NIT - 1
        has_next = not last
        has_next2 = gidx is None or gidx + 2 <= NIT - 1
        if it == 2 and (gidx is None or gidx + 2 <= NIT - 1):
            a.waitcnt(vm=0)
            a.barrier()
            if gidx is None or gidx // 4 + 2 <= 7:
                for f in dma_stage((st + 2) % 3):
                    f()
                if 'notouch' not in os.environ.get('ABL', '') and gidx is None:
                    lb = 'attn_nt%d' % st
                    a.salu('s_cmp_lg_u32', 's13', 2, nodst=True)
                    a.branch('s_cbranch_scc1', lb)
                    a.buf_load('buffer_load_dword', V(TMP + 8), V(TMP + 4 + st), S(56 + 4 * st, 4))
                    if st == 2:
                        a.buf_load('buffer_load_dword', V(TMP + 8), V(TMP + 4 + 3), S(56 + 12, 4))
                    a.label(lb)
        mx = []
        mx.append(lambda: a.valu('v_max3_f32', V(TMP), V(sb), V(sb + 1), V(sb + 2)))
        mx.append(lambda: a.valu('v_max3_f32', V(TMP + 1), V(sb + 3), V(sb + 4), V(sb + 5)))
        k = 6
        while k < 32:
            mx.append(lambda k=k: a.valu('v_max3_f32', V(TMP), V(TMP), V(sb + k), V(sb + k + 1)))
            if k + 3 < 32:
                mx.append(lambda k=k: a.valu('v_max3_f32', V(TMP + 1), V(TMP + 1), V(sb + k + 2), V(sb + k + 3)))
            k += 4
        mx.append(lambda: a.valu('v_max_f32', V(TMP), V(TMP), V(TMP + 1)))
        mx.append(lambda: a.valu('v_cmp_lt_f32', 'vcc', STHR, V(TMP)))
        pv = [] if first else pv_mfmas(pb_prev)
        if first:
            for f in mx:
                f()
        else:
            a.waitcnt(lgkm=4)
            interleave(a, pv[:3], mx)
        rid = rare_id[0]
        rare_id[0] += 1
        a.branch('s_cbranch_vccnz', 'attn_rare%d' % rid)
        a.label('attn_back%d' % rid)
        rare_blocks.append((rid, sb))
        ex = []
        for i in range(32):
            ex.append(lambda i=i: a.valu('v_exp_f32', V(sb + i), V(sb + i)))
            if i % 2 == 0 and i >= 2:
                ex.append(lambda i=i: a.valu('v_cvt_pk_bf16_f32', V(pb_cur + i // 2 - 1), V(sb + i - 2), V(sb + i - 1)))
        ex.append(lambda: a.valu('v_cvt_pk_bf16_f32', V(pb_cur + 15), V(sb + 30), V(sb + 31)))
        mf = pv[3:]
        nrest = len(mf)
        if has_next:
            a.waitcnt(lgkm=0)
            mf = mf + s_mfmas(ss ^ 1)
        b0, i0 = pos(st, it, 0)
        vr = [] if first else v_reads(b0, i0)
        kr = []
        if has_next and has_next2:
            b2, i2 = pos(st, it, 2)
            kr = k_reads(b2, i2)
        n = len(mf)
        j = 0
        for i, m in enumerate(mf):
            m()
            if i == nrest - 1:
                for f in vr:
                    f()
            tgt = (i + 1) * len(ex) // n
            while j < tgt:
                ex[j]()
                j += 1
        while j < len(ex):
            ex[j]()
            j += 1
        for f in kr:
            f()
        if not first:
            a.salu('s_cmp_eq_u32', SFLAG, 0, nodst=True)
            a.branch('s_cbranch_scc0', 'attn_fix%d' % rid)
            a.label('attn_fixb%d' % rid)
            fix_blocks.append(rid)
        else:
            a.salu('s_mov_b32', SFLAG, 0)
        if last:
            a.waitcnt(lgkm=0)
            for f in pv_mfmas(pb_cur):
                f()

    fix_blocks = []
    rare_blocks = []
    a.abl = ABL if ABL.startswith('A') else ''
    stamp(a, 'v217')
    iteration(0, 0, 0, 0, first=True)
    stamp(a, 'v217')
    a.salu('s_mov_b32', 's13', 2)
    a.label('attn_loop')
    a.loop_guard()
    for j in range(1, 13):
        iteration((j // 4) % 3, j % 4, j & 1, None)
    a.salu('s_sub_u32', 's13', 's13', 1)
    a.salu('s_cmp_lg_u32', 's13', 0, nodst=True)
    a.branch('s_cbranch_scc1', 'attn_loop')
    a.loop_guard()
    for j in range(25, 32):
        stamp(a, 'v217')
        iteration((j // 4) % 3, j % 4, j & 1, j)
    stamp(a, 'v217')
    a.abl = ''
    a.nop(16)
    a.valu('v_rcp_f32', V(TMP), V(LA))
    for i in range(16):
        a.valu('v_mul_f32', V(OA + i), V(OA + i), V(TMP))
    for i in range(8):
        a.valu('v_cvt_pk_bf16_f32', V(PB + i), V(OA + 2 * i), V(OA + 2 * i + 1))
    a.valu('v_lshlrev_b32', 'v6', 11, 'v5')
    a.salu('s_lshl_b32', 's8', 's3', 6)
    a.valu('v_add_u32', 'v6', 's8', 'v6')
    a.valu('v_lshl_add_u32', 'v6', 'v4', 4, 'v6')
    for pr in range(2):
        b = PB + 4 * pr
        a.permlane('v_permlane32_swap_b32', V(b), V(b + 2))
        a.permlane('v_permlane32_swap_b32', V(b + 1), V(b + 3))
        a.buf_store('buffer_store_dwordx4', V(b, 4), 'v6', S(52, 4), off=pr * 32)
    stamp(a, 'v217')
    a.waitcnt(vm=0)
    stamp(a, 'v217')
    stamp_dump(a, 0, 'v217')
    a.other('s_endpgm')
    for rid, sb in rare_blocks:
        a.label('attn_rare%d' % rid)
        a.reset_hist()
        a.nop(16)
        a.valu('v_mov_b32', V(TMP + 1), V(TMP))
        a.valu('v_mov_b32', V(TMP + 2), V(TMP))
        a.permlane('v_permlane32_swap_b32', V(TMP + 1), V(TMP + 2))
        a.valu('v_max_f32', V(TMP), V(TMP + 1), V(TMP + 2))
        a.valu('v_max_f32', V(TMP), SFLOOR, V(TMP))
        a.valu('v_sub_f32', V(TMP + 1), 0, V(TMP))
        a.valu('v_exp_f32', V(FV), V(TMP + 1))
        for i in range(16):
            a.valu('v_sub_f32', V(CM + i), V(CM + i), V(TMP))
        for i in range(32):
            a.valu('v_sub_f32', V(sb + i), V(sb + i), V(TMP))
        a.salu('s_mov_b32', SFLAG, 1)
        a.salu('s_mov_b32', STHR, hexf(48.0))
        a.salu('s_mov_b32', SFLOOR, 0)
        a.nop(4)
        a.branch('s_branch', 'attn_back%d' % rid)
    for rid in fix_blocks:
        a.label('attn_fix%d' % rid)
        a.reset_hist()
        a.nop(16)
        for i in range(16):
            a.valu('v_mul_f32', V(OA + i), V(OA + i), V(FV))
            a.valu('v_mul_f32', V(LA + i), V(LA + i), V(FV))
        a.salu('s_mov_b32', SFLAG, 0)
        a.nop(4)
        a.branch('s_branch', 'attn_fixb%d' % rid)
    end_kernel(a, label)
    KERNELS.append((label, (NWG, 1, 1), (512, 1, 1), 98304, 220, 220, 96))


def build(only=None):
    a = Asm()
    k_mod(a)
    k_ln(a, 'ln1_kernel', P_X, 0, WS_H1, 0, 1, touch=[(P_WQKV, 1024 * 6144, 24)])
    k_gemm(a, gemm_qkv())
    k_attn(a)
    k_gemm(a, gemm_wo())
    k_ln(a, 'ln2_kernel', P_WS, WS_X1, WS_H2, 3, 4, tiled=True)
    k_gemm(a, gemm_gateup())
    k_gemm(a, gemm_down())
    hdr = []
    ref = open('cdna_kernels/%s.s.ref' % NAME).read().splitlines()
    for ln in ref:
        if ln.startswith(';') and '@launch' not in ln and 'launch geometry' not in ln and 'grid=ceil' not in ln:
            hdr.append(ln)
    for (label, grid, block, lds, nv, ao, ns) in KERNELS:
        if only is not None and label not in only:
            continue
        hdr.append('; @launch kernel=%s grid=(%d,%d,%d) block=(%d,%d,%d) lds=%d' % ((label,) + grid + block + (lds,)))
    out = '\n'.join(hdr) + '\n'
    out += '.amdgcn_target "amdgcn-amd-amdhsa--gfx950"\n.text\n'
    out += a.text()
    out += '.section .rodata,"a"\n'
    for (label, grid, block, lds, nv, ao, ns) in KERNELS:
        out += '.p2align 6\n.amdhsa_kernel %s\n' % label
        out += '  .amdhsa_next_free_vgpr %d\n' % nv
        out += '  .amdhsa_next_free_sgpr %d\n' % ns
        out += '  .amdhsa_accum_offset %d\n' % ao
        out += '  .amdhsa_group_segment_fixed_size 0\n'
        out += '  .amdhsa_kernarg_size 96\n'
        out += '  .amdhsa_user_sgpr_count 2\n'
        out += '  .amdhsa_user_sgpr_kernarg_segment_ptr 1\n'
        out += '  .amdhsa_system_sgpr_workgroup_id_x 1\n'
        out += '  .amdhsa_float_denorm_mode_32 3\n'
        out += '  .amdhsa_float_denorm_mode_16_64 3\n'
        out += '.end_amdhsa_kernel\n'
    return out


if __name__ == '__main__':
    dst = sys.argv[1] if len(sys.argv) > 1 else 'cdna_kernels/%s.s' % NAME
    open(dst, 'w').write(build())
    print('wrote', dst)
```
